```python
import torch

def _softmax(x, axis=-1):
    return torch.softmax(x, dim=axis)
def _gelu(x):
    return torch.nn.functional.gelu(x, approximate="tanh")
def _silu(x):
    return torch.nn.functional.silu(x)
def _sigmoid(x):
    return torch.sigmoid(x)
def _layernorm(x, axis=-1, eps=1e-5):
    m = x.mean(dim=axis, keepdim=True)
    v = x.var(dim=axis, keepdim=True, unbiased=False)
    return (x - m) / torch.sqrt(v + eps)
def _scatter_add(tgt, idx, src, axis=0):
    return tgt.clone().index_add_(axis, idx, src)
def _segment_sum(src, seg, n):
    out = torch.zeros((n,) + src.shape[1:], dtype=src.dtype)
    return out.index_add_(0, seg, src)
def _pad(x, pw):
    flat = tuple(v for pair in reversed(pw) for v in pair)
    return torch.nn.functional.pad(x, flat)

kernel_name = 'sequential_preLN__ssm_conv_h3__glu_gated_reglu__prompt'

def setup_inputs():

    _w = (lambda a: (lambda t: t.to(torch.bfloat16) if t.is_floating_point() else t)(torch.as_tensor(a)))
    def _A_setup():
        B, S, D = 1, 2048, 640
        ks = 4
        return {
            "q": _w((lambda *s: torch.randn(*s, dtype=torch.bfloat16) * 0.05)(B, S, D)),
            "k": _w((lambda *s: torch.randn(*s, dtype=torch.bfloat16) * 0.2)(B, S, D)),
            "v": _w((lambda *s: torch.randn(*s, dtype=torch.bfloat16) * 0.2)(B, S, D)),
            "shift_k": _w((lambda *s: torch.randn(*s, dtype=torch.bfloat16) * 0.2)(D, ks) * 0.5),
            "ssm_k": _w((lambda *s: torch.randn(*s, dtype=torch.bfloat16) * 0.4)(D, S) * (1.0 / S ** 0.5)),
            "ssm_D": _w((lambda *s: torch.randn(*s, dtype=torch.bfloat16) * 0.2)(D)),
        }
    _A_in = _A_setup()

    def _B_setup():
        B, S, D, F = 1, 2048, 640, 1536
        return {
            "x": _w((lambda *s: torch.randn(*s, dtype=torch.bfloat16) * 0.05)(B, S, D)),
            "W_gate": _w((lambda *s: torch.randn(*s, dtype=torch.bfloat16) * 0.2)(D, F) * (2.0 / D) ** 0.5),
            "W_up": _w((lambda *s: torch.randn(*s, dtype=torch.bfloat16) * 0.2)(D, F) * (2.0 / D) ** 0.5),
            "W_down": _w((lambda *s: torch.randn(*s, dtype=torch.bfloat16) * 0.2)(F, D) * (1.0 / F) ** 0.5),
        }
    _B_in = _B_setup()

    return {
        "A_q": _A_in["q"],
        "A_k": _A_in["k"],
        "A_v": _A_in["v"],
        "A_shift_k": _A_in["shift_k"],
        "A_ssm_k": _A_in["ssm_k"],
        "A_ssm_D": _A_in["ssm_D"],
        "B_x": _B_in["x"],
        "B_W_gate": _B_in["W_gate"],
        "B_W_up": _B_in["W_up"],
        "B_W_down": _B_in["W_down"],
    }

def reference(A_q, A_k, A_v, A_shift_k, A_ssm_k, A_ssm_D, B_x, B_W_gate, B_W_up, B_W_down):
    def _A_ref(q, k, v, shift_k, ssm_k, ssm_D):
        B, S, D = q.shape
        ks = shift_k.shape[-1]
        k_pad = _pad(k, ((0, 0), (ks - 1, 0), (0, 0)))
        k_shift = torch.zeros_like(k)
        for t in range(ks):
            k_shift = k_shift + k_pad[:, t:t + S, :] * shift_k[:, ks - 1 - t][None, None, :]
        kv = k_shift * v
        L = 2 * S
        kv_pad = _pad(kv, ((0, 0), (0, S), (0, 0)))
        kf_pad = _pad(ssm_k, ((0, 0), (0, S)))
        kv_f = (lambda x, axes=(-2,-1): torch.fft.rfft2(x.float(), dim=axes))(kv_pad[:, None, :, :], axes=(1, 2))
        kf_f = (lambda x, axes=(-2,-1): torch.fft.rfft2(x.float(), dim=axes))(kf_pad[:, None, :], axes=(1, 2))
        kf_f = (lambda x, *d: x.permute(*d))(kf_f, 1, 2, 0)
        y_f = kv_f * kf_f[None, :, :, :]
        y = (lambda x, s, axes=(-2,-1): torch.fft.irfft2(x, s=s, dim=axes).to(torch.bfloat16))(y_f, (1, L), axes=(1, 2))[:, 0, :S, :]
        y = y + kv * ssm_D[None, None, :]
        return q * y

    def _B_ref(x, W_gate, W_up, W_down):
        gate = torch.einsum("bsd,df->bsf", x, W_gate)
        up = torch.einsum("bsd,df->bsf", x, W_up)
        gate = gate * (lambda x, dt: x.to(dt))(gate > 0, gate.dtype)
        h = gate * up
        return torch.einsum("bsf,fd->bsd", h, W_down)

    x = A_q
    h = x + _A_ref(_layernorm(x, axis=-1), A_k, A_v, A_shift_k, A_ssm_k, A_ssm_D)
    h2 = h + _B_ref(_layernorm(h, axis=-1), B_W_gate, B_W_up, B_W_down)
    return h2
```

```python
class Asm:
    def __init__(self):
        self.lines = []
        self.kernels = []
        self.launches = []
        self._lab = 0
    def __call__(self, s):
        for l in s.strip("\n").split("\n"):
            self.lines.append("    " + l.strip() if not l.strip().endswith(":") else l.strip())
    def label(self, base="L"):
        self._lab += 1
        return f"{base}_{self._lab}"
    def begin(self, name):
        self.lines += [".p2align 8", f".globl {name}", f".type {name},@function", f"{name}:"]
    def end(self, name, vgpr, sgpr=102, accum=None, wgy=False):
        self.lines.append("    s_endpgm")
        if accum is None:
            accum = (min(vgpr, 256) + 3) // 4 * 4
        self.kernels.append((name, vgpr, sgpr, accum, wgy))
    def launch(self, name, grid, block, lds):
        self.launches.append(f"; @launch kernel={name} grid=({grid[0]},{grid[1]},{grid[2]}) block=({block[0]},{block[1]},{block[2]}) lds={lds}")
    def text(self, header=""):
        o = []
        if header: o.append(header.rstrip("\n"))
        o += self.launches
        o += ['.amdgcn_target "amdgcn-amd-amdhsa--gfx950"', ".text"]
        o += self.lines
        o += ['.section .rodata,"a"']
        for (name, vgpr, sgpr, accum, wgy) in self.kernels:
            o += [".p2align 6", f".amdhsa_kernel {name}",
                  f"  .amdhsa_next_free_vgpr {vgpr}", f"  .amdhsa_next_free_sgpr {sgpr}",
                  f"  .amdhsa_accum_offset {accum}", "  .amdhsa_group_segment_fixed_size 0",
                  "  .amdhsa_kernarg_size 104", "  .amdhsa_user_sgpr_count 2",
                  "  .amdhsa_user_sgpr_kernarg_segment_ptr 1", "  .amdhsa_system_sgpr_workgroup_id_x 1"]
            if wgy: o.append("  .amdhsa_system_sgpr_workgroup_id_y 1")
            o += ["  .amdhsa_float_denorm_mode_32 3", ".end_amdhsa_kernel"]
        return "\n".join(o) + "\n"
```

```python
import sys
from asmlib import Asm

S, D, F = 2048, 640, 1536
WS_UR  = 0x000000
WS_XT  = 0x280000
WS_HT  = 0x500000
WS_R1  = 0x780000
WS_C1  = 0x782000
WS_CS  = 0x790000
WS_WP1 = 0x800000
WS_WP2 = 0xC00000
WS_HH  = 0xE00000
WS_END = 0x1400000
NB_SD = S * D * 2

a = Asm()

def srd(dst, base_lo, nbytes, add=0):
    if add:
        a(f"s_add_u32 s{dst}, s{base_lo}, {add}")
        a(f"s_addc_u32 s{dst+1}, s{base_lo+1}, 0")
    else:
        a(f"s_mov_b32 s{dst}, s{base_lo}")
        a(f"s_mov_b32 s{dst+1}, s{base_lo+1}")
    a(f"s_mov_b32 s{dst+2}, {nbytes}")
    a(f"s_mov_b32 s{dst+3}, 0x20000")

def vr(b, n):
    return f"v[{b}:{b+n-1}]"


import struct
def hexf(x):
    return hex(struct.unpack('<I', struct.pack('<f', x))[0])

import os
TIMING = os.environ.get("TIMING", "0") == "1"
WS_TS = 0x1400000
def stamp(slot):
    if not TIMING: return
    a(f"s_memrealtime s[{70+2*slot}:{71+2*slot}]")
    if slot == 0:
        a("s_memtime s[90:91]")
        a("s_mov_b64 s[86:87], 0")
        a("s_mov_b64 s[88:89], 0")
def cstamp(i):
    if not TIMING: return
    a(f"s_memtime s[{86+2*i}:{87+2*i}]")
def stamp_flush(kidx, nslots, wsbase=12, wave_sgpr=None):
    if not TIMING: return
    L = a.label("TS")
    a("s_memtime s[92:93]")
    a("s_waitcnt vmcnt(0) lgkmcnt(0)")
    a(f"s_memrealtime s[{70+2*nslots}:{71+2*nslots}]")
    a("s_waitcnt lgkmcnt(0)")
    if wave_sgpr is not None:
        a(f"s_cmp_lg_u32 s{wave_sgpr}, 0")
        a(f"s_cbranch_scc1 {L}")
    a(f"s_add_u32 s96, s{wsbase}, {WS_TS + kidx*65536}")
    a(f"s_addc_u32 s97, s{wsbase+1}, 0")
    a(f"s_mov_b32 s98, 65536")
    a(f"s_mov_b32 s99, 0x20000")
    a(f"s_lshl_b32 s94, s2, 6")
    a(f"v_mov_b32 v1, s94")
    a(f"s_sub_u32 s92, s92, s90")
    a("s_mov_b64 exec, 1")
    for i in range(nslots + 1):
        a(f"v_mov_b32 v0, s{70+2*i}")
        a(f"buffer_store_dword v0, v1, s[96:99], 0 offen offset:{4*i}")
    a(f"v_mov_b32 v0, s92")
    a(f"buffer_store_dword v0, v1, s[96:99], 0 offen offset:60")
    a(f"s_sub_u32 s92, s88, s86")
    a(f"v_mov_b32 v0, s92")
    a(f"buffer_store_dword v0, v1, s[96:99], 0 offen offset:48")
    a(f"s_getreg_b32 s92, hwreg(HW_REG_HW_ID)")
    a(f"v_mov_b32 v0, s92")
    a(f"buffer_store_dword v0, v1, s[96:99], 0 offen offset:56")
    a(f"s_getreg_b32 s92, hwreg(HW_REG_XCC_ID)")
    a(f"v_mov_b32 v0, s92")
    a(f"buffer_store_dword v0, v1, s[96:99], 0 offen offset:52")
    a(f"{L}:")
```

```python
import sys, importlib
from gen_common import *
if __name__ == "__main__":
    which = sys.argv[2].split(",") if len(sys.argv) > 2 else ["k1","k2","k3","k4"]
    for w in which:
        m = importlib.import_module(w)
        getattr(m, w[:2])()
    hdr = open("sequential_preLN__ssm_conv_h3__glu_gated_reglu__prompt.s.ref").read().split("\n")
    hdr = [l for l in hdr if l.startswith(";") and "@launch" not in l]
    open(sys.argv[1], "w").write(a.text("\n".join(hdr)))
```

```python
import sys
from asmlib import Asm

S, D, F = 2048, 640, 1536
WS_UR  = 0x000000
WS_XT  = 0x280000
WS_HT  = 0x500000
WS_R1  = 0x780000
WS_C1  = 0x782000
WS_CS  = 0x790000
WS_WP1 = 0x800000
WS_WP2 = 0xC00000
WS_HH  = 0xE00000
WS_END = 0x1400000
NB_SD = S * D * 2

a = Asm()

def srd(dst, base_lo, nbytes, add=0):
    if add:
        a(f"s_add_u32 s{dst}, s{base_lo}, {add}")
        a(f"s_addc_u32 s{dst+1}, s{base_lo+1}, 0")
    else:
        a(f"s_mov_b32 s{dst}, s{base_lo}")
        a(f"s_mov_b32 s{dst+1}, s{base_lo+1}")
    a(f"s_mov_b32 s{dst+2}, {nbytes}")
    a(f"s_mov_b32 s{dst+3}, 0x20000")

def vr(b, n):
    return f"v[{b}:{b+n-1}]"


import struct
def hexf(x):
    return hex(struct.unpack('<I', struct.pack('<f', x))[0])

import os
HS = int(os.environ.get('HS', '4096'))
WS_HT = 0x800000
TIMING = os.environ.get("TIMING", "0") == "1"
WS_TS = 0x1400000
STCFG = {"slots": [70,72,74,76,78,80,82,84], "c": [86, 88]}
def stamp_cfg(slots=None, c=None):
    STCFG["slots"] = slots or [70,72,74,76,78,80,82,84]
    STCFG["c"] = c or [86, 88]
def stamp(slot):
    if not TIMING: return
    r = STCFG["slots"][slot]
    a(f"s_memrealtime s[{r}:{r+1}]")
    if slot == 0:
        a("s_memtime s[90:91]")
def cstamp(i):
    if not TIMING: return
    r = STCFG["c"][i]
    a(f"s_memtime s[{r}:{r+1}]")
def stamp_flush(kidx, nslots, wsbase=12, wave_sgpr=None):
    if not TIMING: return
    L = a.label("TS")
    a("s_memtime s[92:93]")
    a("s_waitcnt vmcnt(0) lgkmcnt(0)")
    r = STCFG["slots"][nslots]
    a(f"s_memrealtime s[{r}:{r+1}]")
    a("s_waitcnt lgkmcnt(0)")
    if wave_sgpr is not None:
        a(f"s_cmp_lg_u32 s{wave_sgpr}, 0")
        a(f"s_cbranch_scc1 {L}")
    a(f"s_add_u32 s96, s{wsbase}, {WS_TS + kidx*65536}")
    a(f"s_addc_u32 s97, s{wsbase+1}, 0")
    a(f"s_mov_b32 s98, 65536")
    a(f"s_mov_b32 s99, 0x20000")
    a(f"s_lshl_b32 s94, s2, 6")
    a(f"v_mov_b32 v1, s94")
    a(f"s_sub_u32 s92, s92, s90")
    a("s_mov_b64 exec, 1")
    for i in range(nslots + 1):
        a(f"v_mov_b32 v0, s{STCFG['slots'][i]}")
        a(f"buffer_store_dword v0, v1, s[96:99], 0 offen offset:{4*i}")
    a(f"v_mov_b32 v0, s92")
    a(f"buffer_store_dword v0, v1, s[96:99], 0 offen offset:60")
    a(f"s_sub_u32 s92, s{STCFG['c'][1]}, s{STCFG['c'][0]}")
    a(f"v_mov_b32 v0, s92")
    a(f"buffer_store_dword v0, v1, s[96:99], 0 offen offset:48")
    a(f"{L}:")
```

```python
from gen_common import *
KNAME = "sequential_preLN__ssm_conv_h3__glu_gated_reglu__prompt_kernel"

WS_CNT = 0x7E0000
P_X, P_K, P_V, P_SK, P_F, P_D, P_WG, P_WU, P_WD, P_OUT, P_DBG, P_WS = 64, 66, 68, 70, 72, 74, 78, 80, 82, 84, 86, 88
WSR, DBR = 92, 96
WSS = f"s[{WSR}:{WSR+3}]"; DBS = f"s[{DBR}:{DBR+3}]"
SC = os.environ.get("SCD", "sc1")
SCS = "sc1"
C1B, C2A = 80, 96
C2B = WS_CNT; R2B = WS_CNT + 128; C3 = WS_CNT + 17*128; R3 = WS_CNT + 33*128
NCONV = 160
FC_STRIDE = 4160
U0_OFF = 4 * FC_STRIDE
U1_OFF = U0_OFF + 4640
IMG = 26112
ST_LDS2 = 4 * IMG
XT_LDS = ST_LDS2 + 16384
STG = 40960
HOFF = 24576
CS_LDS = 3 * STG
ST_LDS = CS_LDS + 1024
HT_LDS = ST_LDS + 16384
LDS_TOTAL = HT_LDS + 12288

_ts = [0]
def mstamp(slot):
    if not TIMING: return
    a(f"s_memrealtime s[100:101]\ns_waitcnt lgkmcnt(0)\nv_writelane_b32 v255, s100, {slot}")
def mflush():
    if not TIMING: return
    a(f"""
    s_waitcnt vmcnt(0)
    s_memrealtime s[100:101]
    s_waitcnt lgkmcnt(0)
    v_writelane_b32 v255, s100, 15
    s_lshl_b32 s100, s2, 3
    s_add_u32 s100, s100, s3
    s_lshl_b32 s100, s100, 6
    s_add_u32 s100, s100, {WS_TS}
    v_mbcnt_lo_u32_b32 v254, -1, 0
    v_mbcnt_hi_u32_b32 v254, -1, v254
    v_lshlrev_b32 v254, 2, v254
    s_mov_b64 exec, 0xffff
    buffer_store_dword v255, v254, {WSS}, s100 offen
    s_mov_b64 exec, -1
    """)

def arrive(srd_, cnt_off, n, rel_off, nrel=1, vt=248):
    L = a.label("ARR")
    a(f"""
    v_mov_b32 v{vt}, {cnt_off}
    v_mov_b32 v{vt+1}, 1
    v_mov_b32 v{vt+3}, 1
    v_lshlrev_b32 v{vt+2}, 7, v0
    v_add_u32 v{vt+2}, {rel_off}, v{vt+2}
    s_mov_b64 exec, 1
    buffer_atomic_add v{vt+1}, v{vt}, {srd_}, 0 offen sc0 sc1
    s_waitcnt vmcnt(0)
    v_readfirstlane_b32 s4, v{vt+1}
    s_mov_b64 exec, {(1 << nrel) - 1}
    s_cmp_lg_u32 s4, {n-1}
    s_cbranch_scc1 {L}
    buffer_store_dword v{vt+3}, v{vt+2}, {srd_}, 0 offen sc1
    {L}:
    s_mov_b64 exec, -1
    """)
def poll(srd_, vaddr, execmask, target, sleep=0, vt=252):
    L = a.label("POLL")
    a(f"""
    s_mov_b64 exec, {execmask}
    s_mov_b32 s4, 0
    {L}:
    buffer_load_dword v{vt}, v{vaddr}, {srd_}, 0 offen {SCS}
    s_add_u32 s4, s4, 1
    s_waitcnt vmcnt(0)
    v_cmp_gt_u32 vcc, {target}, v{vt}
    s_cmp_gt_u32 s4, 0x40000
    s_cbranch_scc1 {L}_x
    """)
    if sleep: a(f"s_sleep {sleep}")
    a(f"""
    s_cbranch_vccnz {L}
    {L}_x:
    s_mov_b64 exec, -1
    """)
def sdiv(dst, src, n):
    a(f"s_mul_i32 s{dst}, s{src}, {(65536 + n - 1) // n}\ns_lshr_b32 s{dst}, s{dst}, 16")
def sel(d, t, e):
    lit = lambda x: isinstance(x, int) and not (-16 <= x <= 64)
    if lit(t) and lit(e): return f"s_mov_b32 s{d}, {e}\ns_cmov_b32 s{d}, {t}"
    return f"s_cselect_b32 s{d}, {t}, {e}"

def tile_lane_setup(rb, cb):
    a(f"""
    v_and_b32 v6, 7, v0                    ; cg
    v_bfe_u32 v5, v0, 3, 2                 ; j
    v_lshrrev_b32 v4, 5, v0                ; hi
    s_lshl_b32 s38, s{rb}, 5
    v_lshl_add_u32 v5, v5, 3, s38          ; S = rb*32 + 8j
    v_lshl_add_u32 v7, v4, 2, v5           ; s0 = S + 4*hi
    s_lshl_b32 s39, s{cb}, 6
    v_lshl_add_u32 v6, v6, 3, s39          ; c0
    v_mul_u32_u24 v1, 1280, v7
    v_lshl_add_u32 v1, v6, 1, v1           ; voff
    v_lshl_add_u32 v4, v4, 2, v6           ; c0 + 4*hi
    v_lshlrev_b32 v4, 12, v4
    """)

def mega():
    name = KNAME
    a.begin(name)
    a(f"""
    s_cmp_ge_u32 s2, 256
    s_cbranch_scc1 M_END
    s_load_dwordx16 s[64:79], s[0:1], 0
    s_load_dwordx8 s[80:87], s[0:1], 64
    s_load_dwordx2 s[88:89], s[0:1], 96
    v_lshrrev_b32 v1, 6, v0
    v_and_b32 v0, 63, v0
    v_readfirstlane_b32 s3, v1
    s_mov_b32 s40, 0xffff0000
    s_mov_b32 s{WSR+2}, {WS_TS + 0x40000 if TIMING else WS_END}
    s_mov_b32 s{WSR+3}, 0x20000
    s_mov_b32 s{DBR+2}, 256
    s_mov_b32 s{DBR+3}, 0x20000
    """)
    if TIMING: a("v_mov_b32 v255, 0")
    mstamp(0)
    a(f"""
    s_cmp_ge_u32 s2, {NCONV}
    s_cbranch_scc1 M_PACKWG
    s_cmp_ge_u32 s3, 4
    s_cbranch_scc1 M_HELPER
    """)
    sdiv(36, 2, 5)
    a(f"""
    s_mul_i32 s37, s36, 5
    s_sub_u32 s37, s2, s37
    s_and_b32 s38, s3, 1
    s_lshl_b32 s36, s36, 1
    s_add_u32 s36, s36, s38          ; rb
    s_lshr_b32 s38, s3, 1
    s_lshl_b32 s37, s37, 1
    s_add_u32 s37, s37, s38          ; cb
    """)
    tile_lane_setup(36, 37)
    a(f"""
    v_add_u32 v2, -3840, v1
    v_lshlrev_b32 v3, 3, v6
    s_lshl_b32 s28, s2, 2
    s_add_u32 s28, s28, s3
    s_lshl_b32 s29, s28, 12
    v_lshlrev_b32 v190, 4, v0              ; lane*16
    v_add_u32 v191, -8, v190
    v_add_u32 v192, 1016, v190
    s_waitcnt lgkmcnt(0)
    s_mov_b32 s{WSR}, s{P_WS}
    s_mov_b32 s{WSR+1}, s{P_WS+1}
    """)
    srd(20, P_K, NB_SD); srd(24, P_V, NB_SD); srd(32, P_SK, D*8)
    for i in range(3):
        a(f"buffer_load_dwordx4 {vr(8+4*i,4)}, v2, s[20:23], 0 offen offset:{i*1280}")
    for i in range(4):
        a(f"buffer_load_dwordx4 {vr(20+4*i,4)}, v1, s[20:23], 0 offen offset:{i*1280}")
    for i in range(4):
        a(f"buffer_load_dwordx4 {vr(36+4*i,4)}, v1, s[24:27], 0 offen offset:{i*1280}")
    for i in range(4):
        a(f"buffer_load_dwordx4 {vr(68+4*i,4)}, v3, s[32:35], 0 offen offset:{i*16}")
    a(f"""
    s_add_u32 s16, s{P_F}, s29
    s_addc_u32 s17, s{P_F+1}, 0
    s_mov_b32 s18, 4096
    s_mov_b32 s19, 0x20000
    """)
    E = 200
    for i in range(4):
        a(f"buffer_load_dwordx4 {vr(E+6*i+2,4)}, v190, s[16:19], 0 offen offset:{1024*i}")
        if i == 0: a(f"buffer_load_dwordx2 {vr(E,2)}, v191, s[16:19], 0 offen")
        else: a(f"buffer_load_dwordx2 {vr(E+6*i,2)}, v192, s[16:19], 0 offen offset:{1024*(i-1)}")
    a(f"""
    v_sub_u32 v5, 2040, v5
    v_lshl_add_u32 v5, v5, 1, v4
    s_and_b32 s36, s28, 0xfffffffe
    s_lshl_b32 s36, s36, 1
    s_load_dword s37, s[{P_D}:{P_D+1}], s36
    s_mul_i32 s30, s3, {IMG}
    v_add_u32 v193, s30, v190
    v_mov_b32 v194, 0
    v_mov_b32 v195, 0
    v_mov_b32 v196, 0
    v_mov_b32 v197, 0
    s_mov_b64 exec, 7
    """)
    for c in range(4): a(f"ds_write_b128 v193, v[194:197] offset:{c*FC_STRIDE}")
    a("s_mov_b64 exec, 0xfffffff")
    a(f"ds_write_b128 v193, v[194:197] offset:{U0_OFF+4096}")
    a(f"ds_write_b128 v193, v[194:197] offset:{U1_OFF+4096}")
    a("s_mov_b64 exec, -1")
    a("s_waitcnt vmcnt(8)")
    mstamp(1)
    Q = 144
    def xreg(e):
        return Q + 4*(e & 3) + (2 if e < 4 else 0)
    for jj, j in enumerate((0, 2, 1, 3)):
        wa0, wa1, wb0, wb1 = 68+4*j, 68+4*j+1, 68+4*j+2, 68+4*j+3
        a(f"""
        v_lshlrev_b32 v106, 16, v{wa0}
        v_lshlrev_b32 v107, 16, v{wb0}
        v_and_b32 v108, s40, v{wa0}
        v_and_b32 v109, s40, v{wb0}
        v_lshlrev_b32 v110, 16, v{wa1}
        v_lshlrev_b32 v111, 16, v{wb1}
        v_and_b32 v112, s40, v{wa1}
        v_and_b32 v113, s40, v{wb1}
        """)
        for i in range(7):
            a(f"v_lshlrev_b32 v{84+2*i}, 16, v{8+4*i+j}")
            a(f"v_and_b32 v{85+2*i}, s40, v{8+4*i+j}")
        for i in range(4):
            a(f"v_lshlrev_b32 v{98+2*i}, 16, v{36+4*i+j}")
            a(f"v_and_b32 v{99+2*i}, s40, v{36+4*i+j}")
        for rho in range(4):
            acc = 114 + 2*rho
            a(f"v_pk_mul_f32 {vr(acc,2)}, {vr(84+2*(rho+3),2)}, {vr(106,2)}")
            for t in range(1, 4):
                a(f"v_pk_fma_f32 {vr(acc,2)}, {vr(84+2*(rho+3-t),2)}, {vr(106+2*t,2)}, {vr(acc,2)}")
        for rho in range(4):
            acc = 114 + 2*rho
            a(f"v_pk_mul_f32 {vr(acc,2)}, {vr(acc,2)}, {vr(98+2*rho,2)}")
        for h in range(2):
            o = xreg(2*j + h)
            a(f"v_cvt_pk_bf16_f32 v{o}, v{114+6+h}, v{114+4+h}")
            a(f"v_cvt_pk_bf16_f32 v{o+1}, v{114+2+h}, v{114+0+h}")
        if jj & 1:
            a("s_nop 1")
            for e in (2*(j-2), 2*(j-2)+1):
                a(f"v_permlane32_swap_b32 v{xreg(e)}, v{xreg(e+4)}")
                a(f"v_permlane32_swap_b32 v{xreg(e)+1}, v{xreg(e+4)+1}")
                a(f"s_mov_b32 s41, {WS_UR + e*4096}")
                a(f"buffer_store_dwordx4 {vr(Q+4*e,4)}, v5, {WSS}, s41 offen {SC}")
    T = 80
    for i in range(4):
        e = E + 6*i; t = T + 12*(i & 1)
        a(f"s_waitcnt vmcnt({12 - 2*(i+1)})")
        a(f"ds_write_b128 v193, {vr(e+2,4)} offset:{3*FC_STRIDE+48+1024*i}")
        for j in range(4): a(f"v_alignbit_b32 v{t+j}, v{e+j+1}, v{e+j}, 16")
        a(f"ds_write_b128 v193, {vr(t,4)} offset:{48+1024*i}")
        for j in range(4): a(f"v_alignbit_b32 v{t+4+j}, v{e+j+2}, v{e+j+1}, 16")
        a(f"ds_write_b128 v193, {vr(t+4,4)} offset:{2*FC_STRIDE+48+1024*i}")
        for j in range(4): a(f"v_mov_b32 v{t+8+j}, v{e+j+1}")
        a(f"ds_write_b128 v193, {vr(t+8,4)} offset:{FC_STRIDE+48+1024*i}")
    a("s_waitcnt vmcnt(0)")
    mstamp(2)
    a("s_barrier                 ; B_a")
    a(f"""
    v_mov_b32 v1, v190
    v_and_b32 v2, 15, v0
    v_lshrrev_b32 v3, 4, v0
    v_add_u32 v6, 8, v1
    v_and_b32 v8, 1, v2
    v_lshlrev_b32 v8, 2, v8
    v_lshrrev_b32 v9, 1, v2
    v_lshl_add_u32 v8, v9, 5, v8
    v_lshl_add_u32 v8, v3, 3, v8           ; P0'
    v_lshlrev_b32 v12, 1, v8
    v_lshlrev_b32 v13, 2, v8
    v_add_u32 v13, {ST_LDS2}, v13
    s_lshl_b32 s31, s3, 12
    s_add_u32 s31, s31, {XT_LDS}
    v_add_u32 v7, s31, v12
    v_and_b32 v9, 3, v2
    v_mul_u32_u24 v9, {FC_STRIDE}, v9
    v_lshrrev_b32 v10, 2, v2
    v_add_u32 v10, v10, v3
    v_lshl_add_u32 v14, v10, 4, v9
    v_add_u32 v14, s30, v14                ; A addr
    v_and_b32 v9, 1, v2
    v_mul_u32_u24 v9, {U1_OFF-U0_OFF}, v9
    v_lshrrev_b32 v10, 1, v2
    v_lshlrev_b32 v10, 2, v10
    v_sub_u32 v10, v3, v10
    v_add_u32 v10, 28, v10
    v_lshl_add_u32 v15, v10, 4, v9
    s_add_u32 s32, s30, {U0_OFF}
    v_add_u32 v15, s32, v15                ; B addr
    v_sub_u32 v11, {2044-1792}, v8
    v_lshlrev_b32 v11, 1, v11
    s_add_u32 s32, s30, {U1_OFF}
    v_add_u32 v11, s32, v11
    s_add_u32 s20, s{P_WS}, s29
    s_addc_u32 s21, s{P_WS+1}, 0
    s_mov_b32 s22, 4096
    s_mov_b32 s23, 0x20000
    s_add_u32 s41, s29, {WS_HT}
    s_add_u32 m0, s30, {U1_OFF}
    """)
    ACC = 16
    for i in range(32): a(f"v_mov_b32 v{ACC+i}, 0")
    BUF = [48, 112]
    a("s_waitcnt lgkmcnt(0)")
    for i in range(8): a(f"ds_read_b128 {vr(BUF[0]+4*i,4)}, v14 offset:{512*i}")
    a("s_barrier                 ; B_b (S1 released)")
    mstamp(3)
    for i in range(4):
        a(f"buffer_load_dwordx4 v1, s[20:23], 0 offen offset:{1024*i} {SC} lds")
    a(f"s_add_u32 m0, s30, {U0_OFF}\ns_nop 0")
    for i in range(4):
        a(f"buffer_load_dwordx4 v6, s[20:23], 0 offen offset:{1024*i} {SC} lds")
    a("s_waitcnt vmcnt(0)")
    mstamp(4)
    def reads(buf, nu):
        A = [f"ds_read_b128 {vr(BUF[buf]+4*i,4)}, v14 offset:{512*i+64*nu}" for i in range(8)]
        B = [f"ds_read_b128 {vr(BUF[buf]+32+4*i,4)}, v15 offset:{512*(7-i)+64*nu}" for i in range(8)]
        return [A[0]] + B + A[1:]
    def mfmas(buf):
        out = []
        for mu in range(8):
            for tau in range(8-mu):
                t = mu + tau
                out.append(f"v_mfma_f32_16x16x32_bf16 {vr(ACC+4*t,4)}, {vr(BUF[buf]+4*mu,4)}, {vr(BUF[buf]+32+4*tau,4)}, {vr(ACC+4*t,4)}")
        return out
    for i in range(8): a(f"ds_read_b128 {vr(BUF[0]+32+4*i,4)}, v15 offset:{512*(7-i)}")
    a("s_mov_b32 s46, 0")
    a("M2_LOOP:")
    for half in range(2):
        a("s_waitcnt lgkmcnt(0)")
        rs = reads(1-half, half+1)
        ms = mfmas(half)
        for i, m in enumerate(ms):
            a(m)
            if i % 2 == 0 and rs: a(rs.pop(0))
            if half == 1 and i == 33:
                a("v_add_u32 v14, 128, v14\nv_add_u32 v15, 128, v15\ns_add_u32 s46, s46, 1\ns_cmp_lt_u32 s46, 4")
    a("s_cbranch_scc1 M2_LOOP")
    a("s_waitcnt lgkmcnt(0)")
    mstamp(5)
    UR_, RR, CR, XR = 48, 64, 96, 160
    for t in range(8): a(f"ds_read_b64 {vr(UR_+2*t,2)}, v11 offset:{512*(7-t)}")
    a("s_barrier")
    for t in range(8):
        a(f"ds_read_b64 {vr(XR+2*t,2)}, v7 offset:{512*t}")
        a(f"ds_read_b128 {vr(RR+4*t,4)}, v13 offset:{1024*t}")
        a(f"ds_read_b128 {vr(CR+4*t,4)}, v13 offset:{8192+1024*t}")
    a(f"""
    s_lshl_b32 s36, s28, 4
    s_and_b32 s36, s36, 16
    s_lshr_b32 s37, s37, s36
    s_lshl_b32 s37, s37, 16
    """)
    for t in range(8):
        a(f"s_waitcnt lgkmcnt({min(15, 3*(7-t))})")
        u0, u1 = UR_+2*t, UR_+2*t+1
        x0, x1 = XR+2*t, XR+2*t+1
        Tt = 128 + 16*(t & 1)
        a(f"""
        v_and_b32 v{Tt+0}, s40, v{u1}
        v_lshlrev_b32 v{Tt+1}, 16, v{u1}
        v_and_b32 v{Tt+2}, s40, v{u0}
        v_lshlrev_b32 v{Tt+3}, 16, v{u0}
        v_lshlrev_b32 v{Tt+4}, 16, v{x0}
        v_and_b32 v{Tt+5}, s40, v{x0}
        v_lshlrev_b32 v{Tt+6}, 16, v{x1}
        v_and_b32 v{Tt+7}, s40, v{x1}
        """)
        for j in range(4):
            a(f"v_fmac_f32 v{ACC+4*t+j}, s37, v{Tt+j}")
        for j in (0, 2):
            a(f"v_pk_fma_f32 {vr(Tt+8+j,2)}, {vr(Tt+4+j,2)}, {vr(RR+4*t+j,2)}, {vr(CR+4*t+j,2)}")
        for j in (0, 2):
            a(f"v_pk_fma_f32 {vr(Tt+j,2)}, {vr(ACC+4*t+j,2)}, {vr(Tt+8+j,2)}, {vr(Tt+4+j,2)}")
        a(f"""
        v_cvt_pk_bf16_f32 v{Tt+12}, v{Tt+0}, v{Tt+1}
        v_cvt_pk_bf16_f32 v{Tt+13}, v{Tt+2}, v{Tt+3}
        buffer_store_dwordx2 {vr(Tt+12,2)}, v12, {WSS}, s41 offen offset:{512*t} {SC}
        """)
    a("s_waitcnt vmcnt(0)")
    mstamp(6)
    a("s_barrier                 ; B_d")
    a("s_cmp_lg_u32 s3, 1\ns_cbranch_scc1 M3_START")
    arrive(WSS, C2B, NCONV, R2B, 16)
    a("s_branch M3_START")
    a(f"""
    M_HELPER:
    s_waitcnt lgkmcnt(0)
    s_mov_b32 s{WSR}, s{P_WS}
    s_mov_b32 s{WSR+1}, s{P_WS+1}
    s_mov_b32 s{DBR}, s{P_DBG}
    s_mov_b32 s{DBR+1}, s{P_DBG+1}
    s_cmp_lg_u32 s3, 4
    s_cbranch_scc1 M_HIDLE
    """)
    sdiv(36, 2, 5)
    a(f"""
    s_mul_i32 s37, s36, 5
    s_sub_u32 s37, s2, s37
    s_lshl_b32 s38, s37, 4
    s_add_u32 s37, s38, 128
    s_lshr_b32 s39, s2, 5
    s_lshl_b32 s39, s39, 4
    s_add_u32 s39, s39, 128
    v_mov_b32 v2, s39
    v_lshlrev_b32 v1, 4, v0
    v_mov_b32 v3, {128+C1B}
    v_mov_b32 v4, {128+C2A}
    s_barrier                 ; B_a
    """)
    arrive(DBS, "s38", 32, "s37")
    poll(DBS, 2, "1", 1, sleep=int(os.environ.get("SL1", "0")))
    a("s_barrier                 ; B_b")
    mstamp(3)
    poll(DBS, 3, "1", 1, sleep=int(os.environ.get("SL2", "4")))
    mstamp(4)
    a(f"""
    s_mov_b32 s36, {WS_R1}
    s_lshl_b32 s37, s2, 14
    s_add_u32 s37, s37, {WS_XT}
    """)
    for blk in range(8):
        src = 36 if blk < 4 else 37
        a(f"s_mov_b32 m0, {ST_LDS2 + blk*4096}\ns_nop 0")
        for i in range(4):
            a(f"buffer_load_dwordx4 v1, {WSS}, s{src} offen offset:{1024*i} {SC} lds")
        a(f"s_add_u32 s{src}, s{src}, 4096")
    poll(DBS, 4, "1", 1, sleep=int(os.environ.get("SL2", "4")))
    mstamp(5)
    a(f"""
    s_barrier                 ; B_c
    s_barrier                 ; B_d
    s_branch M3_START
    M_HIDLE:
    s_barrier
    s_barrier
    s_barrier
    s_barrier
    s_branch M3_START
    """)
    a(f"""
    M_PACKWG:
    s_sub_u32 s28, s2, {NCONV}
    s_lshl_b32 s28, s28, 3
    s_add_u32 s28, s28, s3                 ; slot j 0..767
    s_mov_b32 s41, 0x05040100
    s_mov_b32 s42, 0x07060302
    s_mov_b32 s43, 0x3f803f80
    s_cmp_ge_u32 s28, 640
    s_cbranch_scc1 M_STATS
    """)
    sdiv(36, 28, 10)
    a("s_mul_i32 s37, s36, 10\ns_sub_u32 s37, s28, s37")
    tile_lane_setup(36, 37)
    a(f"""
    s_waitcnt lgkmcnt(0)
    s_mov_b32 s{WSR}, s{P_WS}
    s_mov_b32 s{WSR+1}, s{P_WS+1}
    """)
    srd(16, P_X, NB_SD)
    for i in range(4):
        a(f"buffer_load_dwordx4 {vr(52+4*i,4)}, v1, s[16:19], 0 offen offset:{i*1280}")
    a("v_lshl_add_u32 v4, v5, 1, v4\ns_waitcnt vmcnt(0)")
    def xr2(e): return 8 + 4*(e & 3) + (0 if e < 4 else 2)
    for e in range(8):
        j, h = e >> 1, e & 1
        selr = "s41" if h == 0 else "s42"
        a(f"v_perm_b32 v{xr2(e)}, v{52+4+j}, v{52+j}, {selr}")
        a(f"v_perm_b32 v{xr2(e)+1}, v{52+12+j}, v{52+8+j}, {selr}")
    a("s_nop 1")
    for e in range(4):
        a(f"v_permlane32_swap_b32 v{xr2(e)}, v{xr2(e+4)}")
        a(f"v_permlane32_swap_b32 v{xr2(e)+1}, v{xr2(e+4)+1}")
        a(f"s_mov_b32 s44, {WS_XT + e*4096}")
        a(f"buffer_store_dwordx4 {vr(8+4*e,4)}, v4, {WSS}, s44 offen {SC}")
    a("s_branch M_PACK")
    a(f"""
    M_STATS:
    s_sub_u32 s36, s28, 640
    s_lshl_b32 s36, s36, 4           ; row0
    v_and_b32 v6, 15, v0
    v_lshrrev_b32 v7, 4, v0
    v_add_u32 v7, s36, v7
    v_mul_u32_u24 v1, 1280, v7
    v_lshl_add_u32 v1, v6, 4, v1
    v_add_u32 v2, 5120, v1
    v_add_u32 v3, 10240, v1
    v_add_u32 v4, 15360, v1
    s_waitcnt lgkmcnt(0)
    s_mov_b32 s{WSR}, s{P_WS}
    s_mov_b32 s{WSR+1}, s{P_WS+1}
    """)
    srd(16, P_X, NB_SD)
    for p in range(4):
        for i in range(5):
            a(f"buffer_load_dwordx4 {vr(16+20*p+4*i,4)}, v{1+p}, s[16:19], 0 offen offset:{i*256}")
    a(f"""
    v_lshlrev_b32 v5, 2, v7
    v_add_u32 v5, {WS_R1}, v5
    v_lshl_add_u32 v5, v6, 13, v5
    v_cmp_lt_u32 vcc, 1, v6
    v_mov_b32 v8, 0x80000000
    v_lshlrev_b32 v9, 7, v0
    v_cndmask_b32 v5, v5, v8, vcc
    v_add_u32 v9, {WS_CNT}, v9
    v_mov_b32 v10, 0
    s_cmp_lg_u32 s28, 767
    s_cbranch_scc1 M_NOZERO
    buffer_store_dword v10, v9, {WSS}, 0 offen {SCS}
    s_mov_b64 exec, -1
    M_NOZERO:
    v_cmp_eq_u32 vcc, 0, v6
    """)
    for i in range(8): a(f"v_mov_b32 v{100+i}, 0")
    a("s_waitcnt vmcnt(0)")
    for p in range(4):
        for i in range(20):
            r = 16 + 20*p + i
            a(f"v_dot2_f32_bf16 v{100+2*p}, v{r}, s43, v{100+2*p}")
            a(f"v_dot2_f32_bf16 v{101+2*p}, v{r}, v{r}, v{101+2*p}")
    a("s_nop 2")
    for sh in (8, 4, 2, 1):
        for r in range(100, 108):
            a(f"v_add_f32_dpp v{r}, v{r}, v{r} row_ror:{sh} row_mask:0xf bank_mask:0xf")
    a(f"s_mov_b32 s44, {hexf(1.0/640)}\ns_mov_b32 s45, {hexf(1e-5)}")
    for p in range(4):
        sm, sq = 100+2*p, 101+2*p
        a(f"""
        v_mul_f32 v{sm}, s44, v{sm}
        v_mul_f32 v{sq}, s44, v{sq}
        v_fma_f32 v{sq}, -v{sm}, v{sm}, v{sq}
        v_max_f32 v{sq}, 0, v{sq}
        v_add_f32 v{sq}, s45, v{sq}
        v_rsq_f32 v{sq}, v{sq}
        s_nop 0
        v_mul_f32 v{sm}, v{sm}, v{sq}
        v_sub_f32 v{sm}, 0, v{sm}
        v_cndmask_b32 v{sm}, v{sm}, v{sq}, vcc
        {'s_nop 0' if os.environ.get('E2') else f'buffer_store_dword v{sm}, v5, {WSS}, 0 offen offset:{16*p} {SC}'}
        """)
    a(f"""
    M_PACK:
    s_mov_b32 s{DBR}, s{P_DBG}
    s_mov_b32 s{DBR+1}, s{P_DBG+1}
    v_lshlrev_b32 v1, 4, v0
    v_lshrrev_b32 v3, 4, v0
    s_lshl_b32 s30, s3, 13
    s_mov_b32 s19, 0x20000
    s_mov_b32 s23, 0x20000
    v_and_b32 v28, 1, v3
    v_lshlrev_b32 v28, 12, v28
    v_lshrrev_b32 v29, 1, v3
    v_bfe_u32 v30, v0, 2, 2
    v_lshl_add_u32 v29, v29, 3, v30
    v_lshl_add_u32 v28, v29, 7, v28
    v_and_b32 v29, 3, v0
    v_lshl_add_u32 v28, v29, 3, v28
    v_add_u32 v28, s30, v28
    v_lshlrev_b32 v29, 2, v0
    v_cmp_gt_u32 vcc, 32, v0
    v_mov_b32 v30, 0x40000000
    v_lshrrev_b32 v31, 3, v0
    v_cndmask_b32 v29, v30, v29, vcc
    v_lshrrev_b32 v26, 5, v0
    v_and_b32 v27, 7, v0
    s_sub_u32 s45, s28, 480
    s_cmp_ge_u32 s28, 480
    """)
    SB = 52
    a("\n".join([sel(44,"s45","s28"), sel(45,10,24), sel(46,(65536+9)//10,(65536+23)//24),
                 sel(47,64*1280,32*3072), sel(48,1280,3072), sel(49,4,0),
                 sel(50,16*1280,8*3072), sel(51,5,6), sel(SB+4,5120,6144),
                 sel(60,48,40), sel(61,WS_WP2,WS_WP1), sel(62,(65536+4)//5,(65536+5)//6),
                 f"s_cselect_b32 s16, s{P_WD}, s{P_WG}\ns_cselect_b32 s17, s{P_WD+1}, s{P_WG+1}\ns_cselect_b32 s20, s{P_WD}, s{P_WU}\ns_cselect_b32 s21, s{P_WD+1}, s{P_WU+1}",
                 sel(31,5120,0), sel(32,0x40000000,WS_CS)]))
    a(f"""
    s_cmp_lt_u32 s28, {0 if os.environ.get('E3') else 720}
    s_cselect_b32 s18, {D*F*2}, 0
    s_cselect_b32 s33, 0, 0x40000000
    s_mov_b32 s22, s18
    s_add_u32 s61, s61, s33
    s_mul_i32 s46, s44, s46
    s_lshr_b32 s46, s46, 16
    s_mul_i32 s45, s46, s45
    s_sub_u32 s45, s44, s45
    s_mul_i32 s47, s46, s47
    s_lshl_b32 s33, s45, 7
    s_add_u32 s47, s47, s33
    v_mad_u32_u24 v25, v26, s49, v31
    v_mul_u32_u24 v25, s48, v25
    v_lshl_add_u32 v25, v27, 4, v25
    s_add_u32 s31, s31, s47
    """)
    for q in range(8):
        sr = 47 if q < 4 else 31
        a(f"s_add_u32 m0, s30, {q*1024}\ns_nop 0\nbuffer_load_dwordx4 v25, s[{16+4*(q>>2)}:{19+4*(q>>2)}], s{sr} offen lds\ns_add_u32 s{sr}, s{sr}, s50")
    for b in range(4):
        a(f"""
        s_lshl_b32 s33, s45, 2
        s_add_u32 s33, s33, {b}
        s_mul_i32 s34, s33, s62
        s_lshr_b32 s34, s34, 16
        s_mul_i32 s35, s34, s51
        s_sub_u32 s35, s33, s35
        s_mul_i32 s34, s34, s60
        s_lshl_b32 s33, s46, 1
        s_add_u32 s34, s34, s33
        s_mul_i32 s34, s34, s51
        s_add_u32 s34, s34, s35
        s_lshl_b32 s34, s34, 10
        s_add_u32 s{SB+b}, s34, s61
        """)
    a(f"s_mul_i32 s33, s46, 12288\ns_lshl_b32 s34, s45, 9\ns_add_u32 s33, s33, s34\ns_add_u32 s{SB+5}, s33, s32")
    a("s_waitcnt vmcnt(8)")
    mstamp(1)
    a(f"""
    s_barrier                  ; B_1
    s_cmp_lg_u32 s3, 0
    s_cbranch_scc1 M_P1
    """)
    arrive(DBS, C1B, 256-NCONV, 128+C1B)
    a("M_P1:\ns_waitcnt vmcnt(0)")
    mstamp(2)
    R0 = 32
    for aa in range(2):
        for b in range(4):
            R = R0 + 4*(aa*4+b)
            for x in range(2):
                a(f"ds_read_b64_tr_b16 {vr(R+2*x,2)}, v28 offset:{aa*2048 + x*512 + b*32}")
    C0 = 16
    for b in range(4): a(f"v_mov_b32 v{C0+b}, 0")
    a("s_waitcnt lgkmcnt(0)")
    for aa in range(2):
        for b in range(4):
            R = R0 + 4*(aa*4+b)
            a(f"buffer_store_dwordx4 {vr(R,4)}, v1, {WSS}, s{SB+b} offen {SC}")
            if aa == 0: a(f"s_add_u32 s{SB+b}, s{SB+b}, s{SB+4}")
            for e in range(4):
                a(f"v_dot2_f32_bf16 v{C0+b}, v{R+e}, s43, v{C0+b}")
    a("s_nop 2")
    for b in range(4): a(f"v_mov_b32 v{C0+4+b}, v{C0+b}")
    a("s_nop 1")
    for b in range(4): a(f"v_permlane32_swap_b32 v{C0+b}, v{C0+4+b}")
    a("s_nop 1")
    for b in range(4): a(f"v_add_f32 v{C0+b}, v{C0+b}, v{C0+4+b}")
    for b in range(4): a(f"buffer_store_dword v{C0+b}, v29, {WSS}, s{SB+5} offen offset:{128*b} {SC}")
    a("s_waitcnt vmcnt(0)")
    mstamp(3)
    a(f"""
    s_barrier                  ; B_2
    s_cmp_lg_u32 s3, 0
    s_cbranch_scc1 M_P2
    v_mov_b32 v4, {128+C2A}
    """)
    arrive(DBS, C2A, 256-NCONV, 128+C2A)
    poll(DBS, 4, "1", 1, sleep=int(os.environ.get("SL2", "4")))
    a("M_P2:\ns_barrier                  ; B_e")
    from mega34 import p34
    p34()
    a("M_END:")
    a.end(name, 256, 102)
    a.launches.append(f"; @launch grid=(256,1,1) block=(512,1,1) lds={LDS_TOTAL}")
```

```python
from mega import *

def p34():
    a(f"""
    M3_START:
    s_and_b32 s8, s2, 7                    ; xcd
    s_lshr_b32 s5, s2, 3                   ; j
    s_and_b32 s6, s8, 3
    s_lshl_b32 s6, s6, 2
    s_and_b32 s7, s5, 3
    s_add_u32 s6, s6, s7                   ; sb
    s_lshr_b32 s7, s8, 2
    s_lshl_b32 s7, s7, 3
    s_lshr_b32 s8, s5, 2
    s_add_u32 s7, s7, s8                   ; fb
    v_mov_b32 v2, v0
    v_lshlrev_b32 v4, 4, v2                ; lane*16
    v_lshrrev_b32 v5, 4, v2                ; G
    """)
    mstamp(7)
    a(f"""
    s_cmp_lt_u32 s3, 4
    s_cbranch_scc1 M3_CONS
    """)
    a(f"""
    s_sub_u32 s9, s3, 4                    ; p
    s_mul_i32 s8, s7, {240*1024}
    s_add_u32 s8, s8, {WS_WP1}
    s_add_u32 s16, s{P_WS}, s8
    s_addc_u32 s17, s{P_WS+1}, 0
    s_mov_b32 s18, {240*1024}
    s_mov_b32 s19, 0x20000
    s_mul_i32 s30, s9, 6144
    s_mov_b32 s33, s30
    """)
    def dmaW(sb):
        o = [f"s_add_u32 m0, s{sb}, s30", f"s_add_u32 s35, s33, 4096"]
        for i in range(4):
            o.append(f"buffer_load_dwordx4 v4, s[16:19], s33 offen offset:{1024*i} {SC} lds")
        o += [f"s_add_u32 m0, m0, 4096", f"s_add_u32 s33, s33, 24576"]
        for i in range(2):
            o.append(f"buffer_load_dwordx4 v4, s[16:19], s35 offen offset:{1024*i} {SC} lds")
        return o
    def dmaH(sb):
        o = [f"s_add_u32 m0, s{sb}, s32", f"s_add_u32 s35, s34, {16384-1024}",
             f"buffer_load_dwordx4 v6, s[20:23], s34 offen {SC} lds"]
        for i in range(1, 4):
            o.append(f"buffer_load_dwordx4 v6, s[20:23], s35 offen offset:{1024*i} {SC} lds")
            if i < 3: o.append(f"s_add_u32 s35, s35, {16384-1024}")
        o.append(f"s_add_u32 s34, s34, {64*4096}")
        return o
    for st in range(3):
        a(f"s_mov_b32 s36, {st*STG}")
        for l in dmaW(36): a(l)
    SUM, SQ, DAT, TMP = 16, 24, 32, 48
    a(f"""
    s_lshl_b32 s8, s6, 8
    s_add_u32 s8, s8, {WS_HT}
    s_add_u32 s20, s{P_WS}, s8
    s_addc_u32 s21, s{P_WS+1}, 0
    s_mov_b32 s22, {639*4096+256}
    s_mov_b32 s23, 0x20000
    v_and_b32 v6, 15, v2
    v_lshlrev_b32 v7, 2, v5
    v_xor_b32 v6, v6, v7
    v_lshlrev_b32 v6, 4, v6
    v_lshl_add_u32 v8, v5, 8, v6
    v_lshl_add_u32 v6, v5, 12, v6
    s_lshl_b32 s34, s9, 16
    s_lshl_b32 s32, s9, 12
    s_add_u32 s32, s32, {HOFF}
    v_add_u32 v8, s32, v8
    """)
    for i in range(16): a(f"v_mov_b32 v{SUM+i}, 0")
    a("s_barrier                 ; B_f (S2b released)")
    mstamp(8)
    for st in range(3):
        a(f"s_mov_b32 s36, {st*STG}")
        for l in dmaH(36): a(l)
    a(f"""
    s_mov_b32 s44, 0
    s_mov_b32 s41, {STG}
    s_mov_b32 s42, 0
    s_waitcnt vmcnt(4)
    s_barrier                 ; B_g
    """)
    mstamp(9)
    def stat_reads(base_sgpr):
        o = [f"v_add_u32 v9, s{base_sgpr}, v8"]
        for i in range(4):
            o.append(f"ds_read_b128 {vr(DAT+4*i,4)}, v9 offset:{1024*i}")
        return o
    def stat_valu():
        o = []
        for i in range(4):
            o.append(f"s_waitcnt lgkmcnt({3-i})")
            for e in range(4):
                d = DAT + 4*i + e
                t0, t1 = TMP + 2*(e & 1), TMP + 2*(e & 1) + 1
                o += [f"v_lshlrev_b32 v{t0}, 16, v{d}", f"v_and_b32 v{t1}, s40, v{d}",
                      f"v_add_f32 v{SUM+2*e}, v{SUM+2*e}, v{t0}", f"v_add_f32 v{SUM+2*e+1}, v{SUM+2*e+1}, v{t1}",
                      f"v_fmac_f32 v{SQ+2*e}, v{t0}, v{t0}", f"v_fmac_f32 v{SQ+2*e+1}, v{t1}, v{t1}"]
        return o
    for l in stat_reads(44) + stat_valu(): a(l)
    a(f"""
    M3P_LOOP:
    s_waitcnt vmcnt(10)
    s_barrier
    """)
    for l in stat_reads(41): a(l)
    sv = stat_valu()
    for l in dmaH(44) + dmaW(44):
        a(l)
        if l.startswith("buffer_load"):
            for _ in range(10):
                if sv: a(sv.pop(0))
    for l in sv: a(l)
    a(f"""
    s_mov_b32 s44, s41
    s_add_u32 s41, s41, {STG}
    s_cmp_eq_u32 s41, {3*STG}
    s_cselect_b32 s41, 0, s41
    s_add_u32 s42, s42, 1
    s_cmp_lt_u32 s42, 9
    s_cbranch_scc1 M3P_LOOP
    v_and_b32 v9, 15, v2
    v_lshlrev_b32 v9, 5, v9
    v_lshl_add_u32 v9, v5, 10, v9
    s_lshl_b32 s8, s9, 12
    s_add_u32 s8, s8, {ST_LDS}
    v_add_u32 v9, s8, v9
    ds_write_b128 v9, {vr(SUM,4)}
    ds_write_b128 v9, {vr(SUM+4,4)} offset:16
    ds_write_b128 v9, {vr(SQ,4)} offset:512
    ds_write_b128 v9, {vr(SQ+4,4)} offset:528
    s_waitcnt lgkmcnt(0)
    s_barrier
    """)
    mstamp(10)
    DEPTH = 4
    a(f"""
    s_lshr_b32 s10, s7, 1                  ; db
    s_and_b32 s11, s7, 1
    s_lshl_b32 s8, s6, 1
    s_add_u32 s11, s11, s8                 ; sb64
    s_mul_i32 s8, s10, {48*5120}
    s_mul_i32 s12, s9, {12*5120}
    s_add_u32 s8, s8, s12
    s_add_u32 s30, s8, {WS_WP2}
    s_add_u32 s35, s30, 4096
    s_mul_i32 s8, s11, {4*49152}
    s_mul_i32 s12, s9, {12*1024}
    s_add_u32 s8, s8, s12
    s_add_u32 s31, s8, {WS_HH}
    s_add_u32 s32, s31, {49152}
    s_add_u32 s33, s31, {2*49152}
    s_add_u32 s34, s31, {3*49152}
    """)
    ACC4 = 8
    FB4 = 88
    def loadsW(slab):
        b = FB4 + 36*(slab % DEPTH)
        o = [f"buffer_load_dwordx4 {vr(b+4*dt,4)}, v4, {WSS}, s30 offen offset:{1024*dt} {SC}" for dt in range(4)]
        o.append(f"buffer_load_dwordx4 {vr(b+16,4)}, v4, {WSS}, s35 offen {SC}")
        o.append(f"s_add_u32 s30, s30, 5120\ns_add_u32 s35, s35, 5120")
        return o
    def loadsH(slab):
        b = FB4 + 36*(slab % DEPTH)
        o = [f"buffer_load_dwordx4 {vr(b+20+4*st,4)}, v4, {WSS}, s{31+st} offen offset:{1024*(slab%4)} {SC}" for st in range(4)]
        if slab % 4 == 3:
            o.append("\n".join(f"s_add_u32 s{31+st}, s{31+st}, 4096" for st in range(4)))
        return o
    order = []
    for sl in range(DEPTH):
        for l in loadsW(sl): a(l)
        order += [("w", sl)] * 5
    a(f"""
    v_lshrrev_b32 v5, 3, v2
    v_and_b32 v6, 7, v2
    v_lshlrev_b32 v5, 12, v5
    v_lshl_add_u32 v5, v6, 4, v5
    s_mul_i32 s8, s10, {80*4096}
    s_lshl_b32 s12, s11, 7
    s_add_u32 s8, s8, s12
    s_mul_i32 s12, s9, {24*4096}
    s_add_u32 s8, s8, s12
    s_add_u32 s8, s8, {WS_HT}
    s_mul_i32 s12, s9, 3072
    s_add_u32 m0, s12, {HT_LDS}
    s_add_u32 s12, s8, {32768-1024}
    buffer_load_dwordx4 v5, {WSS}, s8 offen {SC} lds
    s_add_u32 s13, s12, {32768-1024}
    buffer_load_dwordx4 v5, {WSS}, s12 offen offset:1024 {SC} lds
    buffer_load_dwordx4 v5, {WSS}, s13 offen offset:2048 {SC} lds
    """)
    order += [("t", 0)] * 3
    srd(20, P_OUT, NB_SD)
    a("s_waitcnt vmcnt(23)\ns_barrier                 ; B_h\ns_barrier                 ; B_i (S3 released)")
    mstamp(11)
    for sl in range(DEPTH):
        for l in loadsH(sl): a(l)
        order += [("h", sl)] * 4
    for sl in range(12):
        last = max(i for i, o in enumerate(order) if o in (("w", sl), ("h", sl)))
        a(f"s_waitcnt vmcnt({len(order) - 1 - last})")
        if sl == 0: mstamp(12)
        b = FB4 + 36*(sl % DEPTH)
        for dt in range(5):
            for st in range(4):
                c = ACC4 + 4*(dt*4+st)
                src = "0" if sl == 0 else vr(c,4)
                a(f"v_mfma_f32_16x16x32_bf16 {vr(c,4)}, {vr(b+4*dt,4)}, {vr(b+20+4*st,4)}, {src}")
        if sl + DEPTH < 12:
            for l in loadsH(sl + DEPTH) + loadsW(sl + DEPTH): a(l)
            order += [("h", sl + DEPTH)] * 4 + [("w", sl + DEPTH)] * 5
    a(f"""
    s_mul_i32 s8, s9, 20480
    v_add_u32 v5, s8, v4
    s_nop 7
    """)
    mstamp(13)
    for t in range(20):
        a(f"ds_write_b128 v5, {vr(ACC4+4*t,4)} offset:{1024*t}")
    a(f"""
    s_lshl_b32 s8, s9, 10
    v_add_u32 v6, s8, v4
    v_add_u32 v7, 40960, v6
    s_waitcnt vmcnt(0) lgkmcnt(0)
    s_barrier
    """)
    R = FB4
    for w in range(4):
        for dt in range(5):
            base = "v6" if w < 2 else "v7"
            a(f"ds_read_b128 {vr(R+4*(w*5+dt),4)}, {base} offset:{(w&1)*20480 + dt*4096}")
    a(f"""
    v_lshrrev_b32 v8, 4, v2
    v_bfe_u32 v9, v2, 2, 2
    v_lshl_add_u32 v8, v8, 2, v9
    v_lshlrev_b32 v8, 7, v8
    v_and_b32 v9, 3, v2
    v_lshl_add_u32 v8, v9, 3, v8
    s_lshl_b32 s8, s9, 5
    s_add_u32 s8, s8, {HT_LDS}
    v_add_u32 v8, s8, v8
    """)
    HR = R + 80
    for dt in range(5):
        a(f"ds_read_b64_tr_b16 {vr(HR+2*dt,2)}, v8 offset:{dt*2048}")
    a(f"""
    v_and_b32 v9, 15, v2
    v_mul_u32_u24 v9, 1280, v9
    v_lshrrev_b32 v10, 4, v2
    v_lshl_add_u32 v9, v10, 3, v9
    s_lshl_b32 s8, s11, 6
    s_lshl_b32 s12, s9, 4
    s_add_u32 s8, s8, s12
    s_mul_i32 s8, s8, 1280
    s_mul_i32 s12, s10, 160
    s_add_u32 s8, s8, s12
    s_waitcnt lgkmcnt(0)
    """)
    for dt in range(5):
        T = 12 + 8*(dt & 1)
        a(f"""
        v_lshlrev_b32 v{T}, 16, v{HR+2*dt}
        v_and_b32 v{T+1}, s40, v{HR+2*dt}
        v_lshlrev_b32 v{T+2}, 16, v{HR+2*dt+1}
        v_and_b32 v{T+3}, s40, v{HR+2*dt+1}
        """)
        for w in range(4):
            for e in (0, 2):
                a(f"v_pk_add_f32 {vr(T+e,2)}, {vr(T+e,2)}, {vr(R+4*(w*5+dt)+e,2)}")
        a(f"""
        v_cvt_pk_bf16_f32 v{T+4}, v{T}, v{T+1}
        v_cvt_pk_bf16_f32 v{T+5}, v{T+2}, v{T+3}
        buffer_store_dwordx2 {vr(T+4,2)}, v9, s[20:23], s8 offen offset:{32*dt}
        """)
    mstamp(14)
    mflush()
    a("s_endpgm")
    a(f"""
    M3_CONS:
    s_and_b32 s37, s3, 1                   ; wm
    s_lshr_b32 s38, s3, 1                  ; wn
    s_lshl_b32 s8, s3, 8
    v_lshl_add_u32 v3, v2, 2, s8           ; tid*4
    s_mul_i32 s10, s7, 768
    s_add_u32 s10, s10, {WS_CS}
    """)
    for p in range(20):
        a(f"buffer_load_dword v{172+p}, v3, {WSS}, s10 offen {SC}")
        if p < 19: a(f"s_add_u32 s10, s10, 12288")
    a(f"""
    s_mul_i32 s39, s37, 3072
    v_add_u32 v8, s39, v4
    v_bfe_u32 v9, v2, 2, 2
    v_lshrrev_b32 v10, 5, v2
    v_lshl_add_u32 v11, v10, 3, v9
    v_lshlrev_b32 v11, 8, v11
    v_and_b32 v12, 1, v5
    v_lshl_add_u32 v11, v12, 5, v11
    v_and_b32 v12, 3, v2
    v_lshl_add_u32 v11, v12, 3, v11
    v_add_u32 v11, {HOFF}, v11
    s_lshl_b32 s39, s38, 1
    v_xor_b32 v12, s39, v9
    v_xor_b32 v13, 1, v12
    v_lshl_add_u32 v9, v12, 6, v11
    v_lshl_add_u32 v10, v13, 6, v11
    s_and_b32 s39, s2, 15
    s_lshl_b32 s39, s39, 7
    s_add_u32 s39, s39, {R2B}
    v_lshl_add_u32 v14, v2, 2, s39
    s_cmp_lg_u32 s3, 0
    s_cbranch_scc1 M3_NOPOLL
    """)
    poll(WSS, 14, "0x3ff", 1)
    a("M3_NOPOLL:\ns_barrier                 ; B_f")
    mstamp(8)
    ACC = 16
    for i in range(96): a(f"v_mov_b32 v{ACC+i}, 0")
    FB = [116, 136]
    a("s_waitcnt vmcnt(0)")
    for p in range(1, 20):
        a(f"v_add_f32 v172, v172, v{172+p}")
    a(f"v_add_u32 v3, {CS_LDS}, v3")
    a(f"ds_write_b32 v3, v172")
    def reads(buf, ks, va, vb0, vb1):
        o = []
        F_ = FB[buf]
        o.append(f"ds_read_b128 {vr(F_,4)}, v{va} offset:{(ks*6+0)*1024}")
        for j, vb in enumerate((vb0, vb1)):
            for x in range(2):
                o.append(f"ds_read_b64_tr_b16 {vr(F_+12+4*j+2*x,2)}, v{vb} offset:{ks*4096 + x*1024}")
        o.append(f"ds_read_b128 {vr(F_+4,4)}, v{va} offset:{(ks*6+1)*1024}")
        o.append(f"ds_read_b128 {vr(F_+8,4)}, v{va} offset:{(ks*6+2)*1024}")
        return o
    def mfmas(buf):
        F_ = FB[buf]
        o = []
        for i in range(3):
            for j in range(2):
                c = ACC + 16*(2*i+j)
                o.append(f"v_mfma_f32_32x32x16_bf16 {vr(c,16)}, {vr(F_+4*i,4)}, {vr(F_+12+4*j,4)}, {vr(c,16)}")
        return o
    def interleave(ms, fillers, per=2):
        for m in ms:
            a(m)
            for _ in range(per):
                if fillers: a(fillers.pop(0))
        assert not fillers
    a(f"""
    v_mov_b32 v160, v8
    v_mov_b32 v161, v9
    v_mov_b32 v162, v10
    s_mov_b32 s41, {STG}
    s_mov_b32 s42, 0
    s_setprio 1
    s_barrier                 ; B_g
    """)
    mstamp(9)
    for l in reads(0, 0, 160, 161, 162): a(l)
    a("M3_LOOP:")
    for ks in range(3):
        a("s_waitcnt lgkmcnt(0)")
        interleave(mfmas(ks & 1), reads((ks+1) & 1, ks+1, 160, 161, 162))
    a(f"""
    v_add_u32 v160, s41, v8
    v_add_u32 v161, s41, v9
    v_add_u32 v162, s41, v10
    s_waitcnt lgkmcnt(0)
    s_barrier
    """)
    rot = [f"s_add_u32 s41, s41, {STG}", f"s_cmp_eq_u32 s41, {3*STG}", f"s_cselect_b32 s41, 0, s41", "s_add_u32 s42, s42, 1", "s_cmp_lt_u32 s42, 10"]
    interleave(mfmas(1), reads(0, 0, 160, 161, 162) + rot)
    a("s_cbranch_scc1 M3_LOOP")
    CSR = 116
    a("s_waitcnt lgkmcnt(0)")
    mstamp(10)
    a(f"""
    v_lshrrev_b32 v10, 5, v2
    v_lshlrev_b32 v11, 4, v10
    s_mul_i32 s39, s37, 384
    s_add_u32 s39, s39, {CS_LDS}
    v_add_u32 v11, s39, v11
    """)
    for i in range(3):
        for q in range(4):
            a(f"ds_read_b128 {vr(CSR+16*i+4*q,4)}, v11 offset:{i*128+q*32}")
    a(f"""
    v_and_b32 v12, 31, v2
    v_lshlrev_b32 v12, 2, v12
    v_lshl_add_u32 v12, v10, 13, v12
    s_lshl_b32 s39, s38, 8
    s_add_u32 s39, s39, {ST_LDS}
    v_add_u32 v12, s39, v12
    """)
    P = 164
    for sl in range(8):
        a(f"ds_read2_b32 {vr(P+4*sl,2)}, v12 offset0:0 offset1:32")
        a(f"ds_read2_b32 {vr(P+4*sl+2,2)}, v12 offset0:128 offset1:160")
        if sl < 7: a(f"v_add_u32 v12, 1024, v12")
    a(f"""
    v_and_b32 v12, 1, v5
    v_mul_u32_u24 v12, 49152, v12
    v_lshl_add_u32 v12, v10, 8, v12
    v_and_b32 v13, 15, v2
    v_lshl_add_u32 v12, v13, 4, v12
    s_lshl_b32 s43, s6, 3
    s_lshl_b32 s46, s38, 2
    s_add_u32 s43, s43, s46
    s_mul_i32 s43, s43, 49152
    s_mul_i32 s46, s7, 6
    s_mul_i32 s48, s37, 3
    s_add_u32 s46, s46, s48
    s_lshl_b32 s46, s46, 9
    s_add_u32 s43, s43, s46
    s_add_u32 s43, s43, {WS_HH}
    s_add_u32 s46, s43, {2*49152}
    s_mov_b32 s44, {hexf(1.0/640)}
    s_mov_b32 s45, {hexf(1e-5)}
    s_waitcnt lgkmcnt(0)
    """)
    for sl in range(1, 8):
        a(f"v_pk_add_f32 {vr(P,2)}, {vr(P,2)}, {vr(P+4*sl,2)}")
        a(f"v_pk_add_f32 {vr(P+2,2)}, {vr(P+2,2)}, {vr(P+4*sl+2,2)}")
    for r in range(4): a(f"v_mov_b32 v{P+4+r}, v{P+r}")
    a("s_nop 1")
    for r in range(4): a(f"v_permlane32_swap_b32 v{P+r}, v{P+4+r}")
    a("s_nop 1")
    for r in range(4): a(f"v_add_f32 v{P+r}, v{P+r}, v{P+4+r}")
    NM, R2 = P+8, P+12
    for j in range(2):
        sm, sq = P+j, P+2+j
        a(f"""
        v_mul_f32 v{sm}, s44, v{sm}
        v_mul_f32 v{sq}, s44, v{sq}
        v_fma_f32 v{sq}, -v{sm}, v{sm}, v{sq}
        v_max_f32 v{sq}, 0, v{sq}
        v_add_f32 v{sq}, s45, v{sq}
        v_rcp_f32 v{R2+2*j}, v{sq}
        v_sub_f32 v{NM+2*j}, 0, v{sm}
        v_sub_f32 v{NM+2*j+1}, 0, v{sm}
        v_mov_b32 v{R2+2*j+1}, v{R2+2*j}
        """)
    for i in range(3):
        for j in range(2):
            c = ACC + 16*(2*i+j)
            for e in range(0, 16, 2):
                a(f"v_pk_fma_f32 {vr(c+e,2)}, {vr(NM+2*j,2)}, {vr(CSR+16*i+e,2)}, {vr(c+e,2)}")
            for e in range(0, 8, 2):
                a(f"v_max_f32 v{c+e}, 0, v{c+e}")
                a(f"v_max_f32 v{c+e+1}, 0, v{c+e+1}")
                a(f"v_pk_mul_f32 {vr(c+8+e,2)}, {vr(R2+2*j,2)}, {vr(c+8+e,2)}")
            for e in range(0, 8, 2):
                a(f"v_pk_mul_f32 {vr(c+e,2)}, {vr(c+e,2)}, {vr(c+8+e,2)}")
            for e in range(4):
                a(f"v_cvt_pk_bf16_f32 v{c+8+e}, v{c+2*e}, v{c+2*e+1}")
            a(f"buffer_store_dwordx4 {vr(c+8,4)}, v12, {WSS}, s{43 if j==0 else 46} offen offset:{512*i} {SC}")
    a(f"""
    s_lshl_b32 s36, s6, 7
    s_add_u32 s35, s36, {R3}
    s_add_u32 s36, s36, {C3}
    v_mov_b32 v14, s35
    s_waitcnt vmcnt(0)
    """)
    mstamp(11)
    a(f"""
    s_barrier                 ; B_h
    s_cmp_lg_u32 s3, 0
    s_cbranch_scc1 M3_NOPOLL2
    """)
    arrive(WSS, "s36", 16, "s35")
    poll(WSS, 14, "1", 1)
    a("M3_NOPOLL2:\ns_barrier                 ; B_i")
    mstamp(12)
    mflush()
```

```python
import sys
from gen_common import *
import mega
mega.mega()
hdr = open("sequential_preLN__ssm_conv_h3__glu_gated_reglu__prompt.s.ref").read().split("\n")
hdr = [l for l in hdr if l.startswith(";") and "@launch" not in l]
txt = a.text("\n".join(hdr))
if len(sys.argv) > 2 and sys.argv[2] == "list":
    txt = txt.replace("; @launch grid=", f"; @launch kernel={mega.KNAME} grid=")
open(sys.argv[1], "w").write(txt)
```

```python
from gen_common import *
KNAME = "sequential_preLN__ssm_conv_h3__glu_gated_reglu__prompt_kernel"

WS_CNT = 0x7E0000
P_X, P_K, P_V, P_SK, P_F, P_D, P_WG, P_WU, P_WD, P_OUT, P_DBG, P_WS = 64, 66, 68, 70, 72, 74, 78, 80, 82, 84, 86, 88
WSR, DBR = 92, 96
WSS = f"s[{WSR}:{WSR+3}]"; DBS = f"s[{DBR}:{DBR+3}]"
SC = os.environ.get("SCD", "sc1")
SCS = "sc1"
C1B, C2A = 80, 96
C2B = WS_CNT; R2B = WS_CNT + 10*128; C3 = WS_CNT + 26*128; R3 = WS_CNT + 42*128
NCONV = 160
FLG = WS_CNT + 0x4000
S1C = WS_CNT + 64*128
G1B = WS_CNT + 72*128
C1BW = WS_CNT + 80*128
C2AW = WS_CNT + 81*128
RID = 90
FC_STRIDE = 4160
U0_OFF = 4 * FC_STRIDE
U1_OFF = U0_OFF + 4640
IMG = 26112
ST_LDS2 = 4 * IMG
XT_LDS = ST_LDS2 + 16384
STG = 40960
HOFF = 24576
CS_LDS = 3 * STG
ST_LDS = CS_LDS + 1024
HT_LDS = ST_LDS + 16384
SY_LDS = HT_LDS + 12288
LDS_TOTAL = SY_LDS + 64

_ts = [0]
def mstamp(slot):
    if not TIMING: return
    a(f"s_memrealtime s[100:101]\ns_waitcnt lgkmcnt(0)\nv_writelane_b32 v255, s100, {slot}")
def mflush():
    if not TIMING: return
    a(f"""
    s_waitcnt vmcnt(0)
    s_memrealtime s[100:101]
    s_waitcnt lgkmcnt(0)
    v_writelane_b32 v255, s100, 15
    s_lshl_b32 s100, s2, 3
    s_add_u32 s100, s100, s3
    s_lshl_b32 s100, s100, 6
    s_add_u32 s100, s100, {WS_TS}
    v_mbcnt_lo_u32_b32 v254, -1, 0
    v_mbcnt_hi_u32_b32 v254, -1, v254
    v_lshlrev_b32 v254, 2, v254
    s_mov_b64 exec, 0xffff
    buffer_store_dword v255, v254, {WSS}, s100 offen
    s_mov_b64 exec, -1
    """)

def arr_begin(srd_, cnt_off, n, L, vt=248):
    a(f"""
    v_mov_b32 v{vt}, {cnt_off}
    v_mov_b32 v{vt+1}, 1
    s_mov_b64 exec, 1
    buffer_atomic_add v{vt+1}, v{vt}, {srd_}, 0 offen sc0 sc1
    s_waitcnt vmcnt(0)
    v_readfirstlane_b32 s4, v{vt+1}
    s_mov_b64 exec, -1
    s_cmp_lg_u32 s4, {n-1}
    s_cbranch_scc1 {L}
    """)
def release(rel_off, nrel, vt=248):
    a(f"""
    v_mov_b32 v{vt+3}, 1
    v_lshlrev_b32 v{vt+2}, 7, v0
    v_add_u32 v{vt+2}, {rel_off}, v{vt+2}
    """)
    if nrel < 64: a(f"s_mov_b64 exec, {hex((1 << nrel) - 1) if nrel < 32 else '0x7fffffff'}")
    if nrel == 32: a("s_bitset1_b64 exec, 31")
    for i in range(max(1, nrel // 64)):
        if i: a(f"v_add_u32 v{vt+2}, 8192, v{vt+2}")
        a(f"buffer_store_dword v{vt+3}, v{vt+2}, {WSS}, 0 offen sc1")
    a("s_mov_b64 exec, -1")
def arrive(srd_, cnt_off, n, rel_off, nrel=1, vt=248):
    L = a.label("ARR")
    arr_begin(srd_, cnt_off, n, L, vt)
    release(rel_off, nrel, vt)
    a(f"{L}:")
def lds_last(word, n, Lnot, vt=246):
    a(f"""
    v_mov_b32 v{vt}, {SY_LDS + 4*word}
    v_mov_b32 v{vt+1}, 1
    s_mov_b64 exec, 1
    ds_add_rtn_u32 v{vt+1}, v{vt}, v{vt+1}
    s_waitcnt lgkmcnt(0)
    v_readfirstlane_b32 s4, v{vt+1}
    s_mov_b64 exec, -1
    s_cmp_lg_u32 s4, {n-1}
    s_cbranch_scc1 {Lnot}
    """)
def lds_add(word, vt=246):
    a(f"""
    v_mov_b32 v{vt}, {SY_LDS + 4*word}
    v_mov_b32 v{vt+1}, 1
    s_mov_b64 exec, 1
    ds_add_u32 v{vt}, v{vt+1}
    s_mov_b64 exec, -1
    """)
def lds_set(word, vt=246):
    a(f"""
    v_mov_b32 v{vt}, {SY_LDS + 4*word}
    v_mov_b32 v{vt+1}, 1
    ds_write_b32 v{vt}, v{vt+1}
    """)
def lds_wait(word, vt=246, n=1):
    L = a.label("LW")
    a(f"""
    v_mov_b32 v{vt}, {SY_LDS + 4*word}
    s_mov_b32 s4, 0
    {L}:
    ds_read_b32 v{vt+1}, v{vt}
    s_add_u32 s4, s4, 1
    s_waitcnt lgkmcnt(0)
    v_cmp_gt_u32 vcc, {n}, v{vt+1}
    s_cmp_gt_u32 s4, 0x400000
    s_cbranch_scc1 {L}_x
    s_cbranch_vccnz {L}
    {L}_x:
    """)
def pollflag(word, sleep=0):
    a(f"s_lshl_b32 s4, s2, 7\ns_add_u32 s4, s4, {FLG + 4*word}\nv_mov_b32 v247, s4")
    poll(WSS, 247, "1", 1, sleep)
def arrive_s1():
    a(f"""
    s_lshr_b32 s38, s2, 5
    s_lshl_b32 s39, s38, 12
    s_add_u32 s39, s39, {FLG}
    s_lshl_b32 s38, s38, 7
    s_add_u32 s38, s38, {S1C}
    """)
    lds_wait(3)
    arrive(WSS, "s38", 32, "s39", 32)
def arrive_s1b():
    L = a.label("ARR")
    a(f"s_lshr_b32 s38, s2, 5\ns_lshl_b32 s38, s38, 7\ns_add_u32 s38, s38, {G1B}")
    arr_begin(WSS, "s38", 32, L)
    arr_begin(WSS, C1BW, 8, L)
    release(FLG + 4, 256)
    a(f"{L}:")
def poll(srd_, vaddr, execmask, target, sleep=0, vt=252):
    L = a.label("POLL")
    a(f"""
    s_mov_b64 exec, {execmask}
    s_mov_b32 s4, 0
    {L}:
    buffer_load_dword v{vt}, v{vaddr}, {srd_}, 0 offen {SCS}
    s_add_u32 s4, s4, 1
    s_waitcnt vmcnt(0)
    v_cmp_gt_u32 vcc, {target}, v{vt}
    s_cmp_gt_u32 s4, 0x40000
    s_cbranch_scc1 {L}_x
    """)
    if sleep: a(f"s_sleep {sleep}")
    a(f"""
    s_cbranch_vccnz {L}
    {L}_x:
    s_mov_b64 exec, -1
    """)
def sdiv(dst, src, n):
    a(f"s_mul_i32 s{dst}, s{src}, {(65536 + n - 1) // n}\ns_lshr_b32 s{dst}, s{dst}, 16")
def sel(d, t, e):
    lit = lambda x: isinstance(x, int) and not (-16 <= x <= 64)
    if lit(t) and lit(e): return f"s_mov_b32 s{d}, {e}\ns_cmov_b32 s{d}, {t}"
    return f"s_cselect_b32 s{d}, {t}, {e}"


def tile_lane_setup(tsg):
    a(f"""
    v_and_b32 v6, 31, v0
    s_lshl_b32 s38, s{tsg}, 5
    v_add_u32 v6, s38, v6                  ; p
    v_mul_u32_u24 v5, 205, v6
    v_lshrrev_b32 v5, 11, v5               ; j = p/10
    v_cmp_gt_u32 vcc, 80, v6
    v_mul_u32_u24 v4, 10, v5
    v_sub_u32 v6, v6, v4                   ; cg
    v_lshrrev_b32 v4, 5, v0                ; hi
    s_and_b32 s38, s2, 31
    s_lshl_b32 s38, s38, 6
    v_lshl_add_u32 v5, v5, 3, s38          ; S
    v_lshl_add_u32 v7, v4, 2, v5           ; s0
    s_lshr_b32 s39, s2, 5
    s_mul_i32 s39, s39, 80
    v_lshl_add_u32 v6, v6, 3, s39          ; c0
    v_mul_u32_u24 v1, 1280, v7
    v_lshl_add_u32 v1, v6, 1, v1           ; voff
    v_lshl_add_u32 v4, v4, 2, v6
    v_lshlrev_b32 v4, 12, v4
    v_mov_b32 v7, 0x80000000
    v_cndmask_b32 v1, v7, v1, vcc
    v_cndmask_b32 v4, v7, v4, vcc
    """)

def mega():
    name = KNAME
    a.begin(name)
    a(f"""
    s_cmp_ge_u32 s2, 256
    s_cbranch_scc1 M_END
    s_load_dwordx16 s[64:79], s[0:1], 0
    s_load_dwordx8 s[80:87], s[0:1], 64
    s_load_dwordx2 s[88:89], s[0:1], 96
    v_lshrrev_b32 v1, 6, v0
    v_and_b32 v0, 63, v0
    v_readfirstlane_b32 s3, v1
    s_mov_b32 s40, 0xffff0000
    s_mov_b32 s43, 0x3f803f80
    s_mov_b32 s{WSR+2}, {WS_TS + 0x40000 if TIMING else WS_END}
    s_mov_b32 s{WSR+3}, 0x20000
    s_mov_b32 s{DBR+2}, 256
    s_mov_b32 s{DBR+3}, 0x20000
    s_and_b32 s5, s3, 3
    s_lshr_b32 s6, s2, 5                   ; g
    s_and_b32 s7, s6, 1
    s_lshl_b32 s7, s7, 2
    s_add_u32 s7, s7, s2
    s_and_b32 s7, s7, 31                   ; r
    s_mul_i32 s8, s6, 20
    s_add_u32 s8, s8, s7
    s_mul_i32 s9, s6, 12
    s_add_u32 s9, s9, s7
    s_add_u32 s9, s9, 140
    s_cmp_lt_u32 s7, 20
    s_cselect_b32 s{RID}, s8, s9
    """)
    if TIMING: a("v_mov_b32 v255, 0")
    mstamp(0)
    tile_lane_setup(5)
    a(f"""
    s_cmp_ge_u32 s3, 4
    s_cbranch_scc1 M_UPPER
    """)
    a(f"""
    v_add_u32 v2, -3840, v1
    v_lshlrev_b32 v3, 3, v6
    s_lshl_b32 s28, s{RID}, 2
    s_add_u32 s28, s28, s3
    s_cmp_lt_u32 s{RID}, {NCONV}
    s_cselect_b32 s28, s28, 0
    s_cselect_b32 s18, 4096, 0
    s_lshl_b32 s29, s28, 12
    v_lshlrev_b32 v190, 4, v0
    v_add_u32 v191, -8, v190
    v_add_u32 v192, 1016, v190
    s_waitcnt lgkmcnt(0)
    """)
    srd(20, P_K, NB_SD); srd(24, P_V, NB_SD); srd(32, P_SK, D*8)
    for i in range(3):
        a(f"buffer_load_dwordx4 {vr(8+4*i,4)}, v2, s[20:23], 0 offen offset:{i*1280}")
    for i in range(4):
        a(f"buffer_load_dwordx4 {vr(20+4*i,4)}, v1, s[20:23], 0 offen offset:{i*1280}")
    for i in range(4):
        a(f"buffer_load_dwordx4 {vr(36+4*i,4)}, v1, s[24:27], 0 offen offset:{i*1280}")
    for i in range(4):
        a(f"buffer_load_dwordx4 {vr(68+4*i,4)}, v3, s[32:35], 0 offen offset:{i*16}")
    a(f"""
    s_add_u32 s16, s{P_F}, s29
    s_addc_u32 s17, s{P_F+1}, 0
    s_mov_b32 s19, 0x20000
    s_mov_b32 s{WSR}, s{P_WS}
    s_mov_b32 s{WSR+1}, s{P_WS+1}
    s_mov_b32 s{DBR}, s{P_DBG}
    s_mov_b32 s{DBR+1}, s{P_DBG+1}
    s_lshl_b32 s8, s2, 7
    s_add_u32 s8, s8, {FLG}
    s_lshl_b32 s9, s6, 7
    s_add_u32 s9, s9, {G1B}
    s_and_b32 s10, s2, 31
    s_cmp_eq_u32 s10, 0
    s_mov_b32 s9, 0x40000000
    v_mov_b32 v198, s8
    v_mov_b32 v199, s9
    v_cmp_eq_u32 vcc, 0, v0
    v_mov_b32 v194, 0
    v_mov_b32 v195, 0
    v_mov_b32 v196, 0
    v_mov_b32 v197, 0
    v_cndmask_b32 v198, v199, v198, vcc
    s_cmp_eq_u32 s3, 3
    s_cselect_b32 s10, 0, 0x40000000
    s_mov_b64 exec, 3
    buffer_store_dwordx4 v[194:197], v198, {WSS}, s10 offen sc1
    s_mov_b64 exec, -1
    """)
    E = 200
    FD = True
    def floads():
        for i in range(4):
            a(f"buffer_load_dwordx4 {vr(E+6*i+2,4)}, v190, s[16:19], 0 offen offset:{1024*i}")
            if i == 0: a(f"buffer_load_dwordx2 {vr(E,2)}, v191, s[16:19], 0 offen")
            else: a(f"buffer_load_dwordx2 {vr(E+6*i,2)}, v192, s[16:19], 0 offen offset:{1024*(i-1)}")
    if not FD: floads()
    a(f"""
    v_sub_u32 v5, 2040, v5
    v_lshl_add_u32 v5, v5, 1, v4
    s_and_b32 s36, s28, 0xfffffffe
    s_lshl_b32 s36, s36, 1
    s_load_dword s37, s[{P_D}:{P_D+1}], s36
    s_mul_i32 s30, s3, {IMG}
    v_add_u32 v193, s30, v190
    v_mov_b32 v194, 0
    v_mov_b32 v195, 0
    v_mov_b32 v196, 0
    v_mov_b32 v197, 0
    s_mov_b64 exec, 7
    """)
    for c in range(4): a(f"ds_write_b128 v193, v[194:197] offset:{c*FC_STRIDE}")
    a("s_mov_b64 exec, 0xfffffff")
    a(f"ds_write_b128 v193, v[194:197] offset:{U0_OFF+4096}")
    a(f"ds_write_b128 v193, v[194:197] offset:{U1_OFF+4096}")
    a("s_mov_b64 exec, -1")
    a(f"""
    v_mov_b32 v198, {SY_LDS}
    ds_write_b128 v198, v[194:197]
    ds_write_b128 v198, v[194:197] offset:16
    s_waitcnt lgkmcnt(0)
    s_barrier                 ; B_init
    s_waitcnt vmcnt({0 if FD else 8})
    """)
    mstamp(1)
    lds_add(5)
    a("s_cmp_eq_u32 s3, 3\ns_cbranch_scc1 M_SKIPKV")
    Q = 144
    def xreg(e):
        return Q + 4*(e & 3) + (2 if e < 4 else 0)
    for jj, j in enumerate((0, 2, 1, 3)):
        wa0, wa1, wb0, wb1 = 68+4*j, 68+4*j+1, 68+4*j+2, 68+4*j+3
        a(f"""
        v_lshlrev_b32 v106, 16, v{wa0}
        v_lshlrev_b32 v107, 16, v{wb0}
        v_and_b32 v108, s40, v{wa0}
        v_and_b32 v109, s40, v{wb0}
        v_lshlrev_b32 v110, 16, v{wa1}
        v_lshlrev_b32 v111, 16, v{wb1}
        v_and_b32 v112, s40, v{wa1}
        v_and_b32 v113, s40, v{wb1}
        """)
        for i in range(7):
            a(f"v_lshlrev_b32 v{84+2*i}, 16, v{8+4*i+j}")
            a(f"v_and_b32 v{85+2*i}, s40, v{8+4*i+j}")
        for i in range(4):
            a(f"v_lshlrev_b32 v{98+2*i}, 16, v{36+4*i+j}")
            a(f"v_and_b32 v{99+2*i}, s40, v{36+4*i+j}")
        for rho in range(4):
            acc = 114 + 2*rho
            a(f"v_pk_mul_f32 {vr(acc,2)}, {vr(84+2*(rho+3),2)}, {vr(106,2)}")
            for t in range(1, 4):
                a(f"v_pk_fma_f32 {vr(acc,2)}, {vr(84+2*(rho+3-t),2)}, {vr(106+2*t,2)}, {vr(acc,2)}")
        for rho in range(4):
            acc = 114 + 2*rho
            a(f"v_pk_mul_f32 {vr(acc,2)}, {vr(acc,2)}, {vr(98+2*rho,2)}")
        for h in range(2):
            o = xreg(2*j + h)
            a(f"v_cvt_pk_bf16_f32 v{o}, v{114+6+h}, v{114+4+h}")
            a(f"v_cvt_pk_bf16_f32 v{o+1}, v{114+2+h}, v{114+0+h}")
        if jj & 1:
            a("s_nop 1")
            for e in (2*(j-2), 2*(j-2)+1):
                a(f"v_permlane32_swap_b32 v{xreg(e)}, v{xreg(e+4)}")
                a(f"v_permlane32_swap_b32 v{xreg(e)+1}, v{xreg(e+4)+1}")
                a(f"s_mov_b32 s41, {WS_UR + e*4096}")
                a(f"buffer_store_dwordx4 {vr(Q+4*e,4)}, v5, {WSS}, s41 offen {SC}")
    mstamp(14)
    floads()
    a("s_waitcnt vmcnt(8)")
    mstamp(2)
    lds_add(0)
    a("s_branch M_KVDONE\nM_SKIPKV:")
    floads()
    a(f"""
    M_KVDONE:
    s_cmp_ge_u32 s{RID}, {NCONV}
    s_cbranch_scc1 M_LOWNC
    """)
    T = 80
    for i in range(4):
        e = E + 6*i; t = T + 12*(i & 1)
        a(f"s_waitcnt vmcnt({8 - 2*(i+1)})")
        a(f"ds_write_b128 v193, {vr(e+2,4)} offset:{3*FC_STRIDE+48+1024*i}")
        for j in range(4): a(f"v_alignbit_b32 v{t+j}, v{e+j+1}, v{e+j}, 16")
        a(f"ds_write_b128 v193, {vr(t,4)} offset:{48+1024*i}")
        for j in range(4): a(f"v_alignbit_b32 v{t+4+j}, v{e+j+2}, v{e+j+1}, 16")
        a(f"ds_write_b128 v193, {vr(t+4,4)} offset:{2*FC_STRIDE+48+1024*i}")
        for j in range(4): a(f"v_mov_b32 v{t+8+j}, v{e+j+1}")
        a(f"ds_write_b128 v193, {vr(t+8,4)} offset:{FC_STRIDE+48+1024*i}")
    a(f"""
    v_mov_b32 v1, v190
    v_and_b32 v2, 15, v0
    v_lshrrev_b32 v3, 4, v0
    v_add_u32 v6, 8, v1
    v_and_b32 v8, 1, v2
    v_lshlrev_b32 v8, 2, v8
    v_lshrrev_b32 v9, 1, v2
    v_lshl_add_u32 v8, v9, 5, v8
    v_lshl_add_u32 v8, v3, 3, v8           ; P0'
    v_lshlrev_b32 v12, 1, v8
    v_lshlrev_b32 v13, 2, v8
    v_add_u32 v13, {ST_LDS2}, v13
    s_lshl_b32 s31, s3, 12
    s_add_u32 s31, s31, {XT_LDS}
    v_add_u32 v7, s31, v12
    v_and_b32 v9, 3, v2
    v_mul_u32_u24 v9, {FC_STRIDE}, v9
    v_lshrrev_b32 v10, 2, v2
    v_add_u32 v10, v10, v3
    v_lshl_add_u32 v14, v10, 4, v9
    v_add_u32 v14, s30, v14                ; A addr
    v_and_b32 v9, 1, v2
    v_mul_u32_u24 v9, {U1_OFF-U0_OFF}, v9
    v_lshrrev_b32 v10, 1, v2
    v_lshlrev_b32 v10, 2, v10
    v_sub_u32 v10, v3, v10
    v_add_u32 v10, 28, v10
    v_lshl_add_u32 v15, v10, 4, v9
    s_add_u32 s32, s30, {U0_OFF}
    v_add_u32 v15, s32, v15                ; B addr
    v_sub_u32 v11, {2044-1792}, v8
    v_lshlrev_b32 v11, 1, v11
    s_add_u32 s32, s30, {U1_OFF}
    v_add_u32 v11, s32, v11
    s_add_u32 s20, s{P_WS}, s29
    s_addc_u32 s21, s{P_WS+1}, 0
    s_mov_b32 s22, 4096
    s_mov_b32 s23, 0x20000
    s_add_u32 s41, s29, {WS_HT}
    s_add_u32 m0, s30, {U1_OFF}
    """)
    ACC = 16
    for i in range(32): a(f"v_mov_b32 v{ACC+i}, 0")
    BUF = [48, 112]
    a("s_waitcnt lgkmcnt(0)")
    for i in range(8): a(f"ds_read_b128 {vr(BUF[0]+4*i,4)}, v14 offset:{512*i}")
    a("s_cmp_lg_u32 s3, 3\ns_cbranch_scc1 M_NOS1")
    lds_wait(0, n=3)
    arrive_s1()
    pollflag(0)
    lds_set(1)
    a("s_branch M_S1OK\nM_NOS1:")
    lds_wait(1)
    a("M_S1OK:")
    mstamp(3)
    for i in range(4):
        a(f"buffer_load_dwordx4 v1, s[20:23], 0 offen offset:{1024*i} {SC} lds")
    a(f"s_add_u32 m0, s30, {U0_OFF}\ns_nop 0")
    for i in range(4):
        a(f"buffer_load_dwordx4 v6, s[20:23], 0 offen offset:{1024*i} {SC} lds")
    a("s_waitcnt vmcnt(0)")
    mstamp(4)
    def reads(buf, nu):
        A = [f"ds_read_b128 {vr(BUF[buf]+4*i,4)}, v14 offset:{512*i+64*nu}" for i in range(8)]
        B = [f"ds_read_b128 {vr(BUF[buf]+32+4*i,4)}, v15 offset:{512*(7-i)+64*nu}" for i in range(8)]
        return [A[0]] + B + A[1:]
    def mfmas(buf):
        out = []
        for mu in range(8):
            for tau in range(8-mu):
                t = mu + tau
                out.append(f"v_mfma_f32_16x16x32_bf16 {vr(ACC+4*t,4)}, {vr(BUF[buf]+4*mu,4)}, {vr(BUF[buf]+32+4*tau,4)}, {vr(ACC+4*t,4)}")
        return out
    for i in range(8): a(f"ds_read_b128 {vr(BUF[0]+32+4*i,4)}, v15 offset:{512*(7-i)}")
    a("s_mov_b32 s46, 0")
    a("M2_LOOP:")
    for half in range(2):
        a("s_waitcnt lgkmcnt(0)")
        rs = reads(1-half, half+1)
        ms = mfmas(half)
        for i, m in enumerate(ms):
            a(m)
            if i % 2 == 0 and rs: a(rs.pop(0))
            if half == 1 and i == 33:
                a("v_add_u32 v14, 128, v14\nv_add_u32 v15, 128, v15\ns_add_u32 s46, s46, 1\ns_cmp_lt_u32 s46, 4")
    a("s_cbranch_scc1 M2_LOOP")
    a("s_waitcnt lgkmcnt(0)")
    mstamp(5)
    UR_, RR, CR, XR = 48, 64, 96, 160
    for t in range(8): a(f"ds_read_b64 {vr(UR_+2*t,2)}, v11 offset:{512*(7-t)}")
    a("s_barrier")
    for t in range(8):
        a(f"ds_read_b64 {vr(XR+2*t,2)}, v7 offset:{512*t}")
        a(f"ds_read_b128 {vr(RR+4*t,4)}, v13 offset:{1024*t}")
        a(f"ds_read_b128 {vr(CR+4*t,4)}, v13 offset:{8192+1024*t}")
    a(f"""
    s_lshl_b32 s36, s28, 4
    s_and_b32 s36, s36, 16
    s_lshr_b32 s37, s37, s36
    s_lshl_b32 s37, s37, 16
    """)
    for t in range(8):
        a(f"s_waitcnt lgkmcnt({min(15, 3*(7-t))})")
        u0, u1 = UR_+2*t, UR_+2*t+1
        x0, x1 = XR+2*t, XR+2*t+1
        Tt = 128 + 16*(t & 1)
        a(f"""
        v_and_b32 v{Tt+0}, s40, v{u1}
        v_lshlrev_b32 v{Tt+1}, 16, v{u1}
        v_and_b32 v{Tt+2}, s40, v{u0}
        v_lshlrev_b32 v{Tt+3}, 16, v{u0}
        v_lshlrev_b32 v{Tt+4}, 16, v{x0}
        v_and_b32 v{Tt+5}, s40, v{x0}
        v_lshlrev_b32 v{Tt+6}, 16, v{x1}
        v_and_b32 v{Tt+7}, s40, v{x1}
        """)
        for j in range(4):
            a(f"v_fmac_f32 v{ACC+4*t+j}, s37, v{Tt+j}")
        for j in (0, 2):
            a(f"v_pk_fma_f32 {vr(Tt+8+j,2)}, {vr(Tt+4+j,2)}, {vr(RR+4*t+j,2)}, {vr(CR+4*t+j,2)}")
        for j in (0, 2):
            a(f"v_pk_fma_f32 {vr(Tt+j,2)}, {vr(ACC+4*t+j,2)}, {vr(Tt+8+j,2)}, {vr(Tt+4+j,2)}")
        a(f"""
        v_cvt_pk_bf16_f32 v{Tt+12}, v{Tt+0}, v{Tt+1}
        v_cvt_pk_bf16_f32 v{Tt+13}, v{Tt+2}, v{Tt+3}
        buffer_store_dwordx2 {vr(Tt+12,2)}, v12, {WSS}, s41 offen offset:{512*t} {SC}
        """)
    a("s_waitcnt vmcnt(0)")
    mstamp(6)
    a("s_barrier                 ; B_d")
    a(f"""
    s_cmp_lg_u32 s3, 1
    s_cbranch_scc1 M_P2
    s_lshr_b32 s38, s{RID}, 4
    s_lshl_b32 s39, s38, 2
    s_add_u32 s39, s39, {R2B}
    s_lshl_b32 s38, s38, 7
    s_add_u32 s38, s38, {C2B}
    """)
    arrive(WSS, "s38", 16, "s39", 16)
    a("s_branch M_P2")
    a(f"""
    M_LOWNC:
    s_cmp_lg_u32 s3, 3
    s_cbranch_scc1 M_PACK
    """)
    lds_wait(0, n=3)
    arrive_s1()
    pollflag(0)
    lds_set(1)
    a("s_branch M_PACK")
    a(f"""
    M_UPPER:
    s_mov_b32 s41, 0x05040100
    s_mov_b32 s42, 0x07060302
    v_lshl_add_u32 v4, v5, 1, v4
    s_waitcnt lgkmcnt(0)
    s_mov_b32 s{WSR}, s{P_WS}
    s_mov_b32 s{WSR+1}, s{P_WS+1}
    s_mov_b32 s{DBR}, s{P_DBG}
    s_mov_b32 s{DBR+1}, s{P_DBG+1}
    """)
    srd(16, P_X, NB_SD)
    a(f"""
    s_cmp_eq_u32 s3, 7
    s_cbranch_scc1 M_STATS
    s_getpc_b64 s[44:45]
    M_PCREF:
    s_sub_u32 s44, s44, M_PCREF-{KNAME}
    s_subb_u32 s45, s45, 0
    s_lshl_b32 s46, s5, 13
    v_lshlrev_b32 v8, 7, v0
    v_add_u32 v8, s46, v8
    v_min_u32 v8, M_CODE_END-{KNAME}-4, v8
    {"global_load_dword v9, v8, s[44:45]" if os.environ.get("NOCPF") != "1" else "s_nop 0"}
    s_lshr_b32 s46, s2, 3
    s_add_u32 s46, s46, s5
    s_and_b32 s46, s46, 7
    s_lshl_b32 s46, s46, 22
    v_lshlrev_b32 v10, 16, v0
    {f"buffer_load_dword v11, v10, {WSS}, s46 offen sc1" if os.environ.get("TLB") == "1" else "s_nop 0"}
    s_barrier                 ; B_init
    """)
    if os.environ.get("XG") == "1": lds_wait(5, n=4)
    for i in range(4):
        a(f"buffer_load_dwordx4 {vr(52+4*i,4)}, v1, s[16:19], 0 offen offset:{i*1280}")
    a("s_waitcnt vmcnt(0)")
    def xr2(e): return 8 + 4*(e & 3) + (0 if e < 4 else 2)
    for e in range(8):
        j, h = e >> 1, e & 1
        selr = "s41" if h == 0 else "s42"
        a(f"v_perm_b32 v{xr2(e)}, v{52+4+j}, v{52+j}, {selr}")
        a(f"v_perm_b32 v{xr2(e)+1}, v{52+12+j}, v{52+8+j}, {selr}")
    lds_wait(0, n=3)
    a("s_nop 1")
    for e in range(4):
        a(f"v_permlane32_swap_b32 v{xr2(e)}, v{xr2(e+4)}")
        a(f"v_permlane32_swap_b32 v{xr2(e)+1}, v{xr2(e+4)+1}")
        a(f"s_mov_b32 s44, {WS_XT + e*4096}")
        a(f"buffer_store_dwordx4 {vr(8+4*e,4)}, v4, {WSS}, s44 offen {SC}")
    a("s_branch M_UPDONE")
    a(f"""
    M_STATS:
    s_and_b32 s36, s2, 31
    s_lshl_b32 s36, s36, 6
    s_lshr_b32 s37, s2, 5
    s_lshl_b32 s37, s37, 3
    s_add_u32 s36, s36, s37
    v_and_b32 v6, 15, v0
    v_lshrrev_b32 v7, 4, v0
    v_add_u32 v7, s36, v7
    v_mul_u32_u24 v1, 1280, v7
    v_lshl_add_u32 v1, v6, 4, v1
    v_add_u32 v2, 5120, v1
    v_lshlrev_b32 v5, 2, v7
    v_add_u32 v5, {WS_R1}, v5
    v_lshl_add_u32 v5, v6, 13, v5
    v_cmp_lt_u32 vcc, 1, v6
    v_mov_b32 v8, 0x80000000
    v_lshlrev_b32 v9, 4, v0
    v_cndmask_b32 v5, v5, v8, vcc
    v_add_u32 v9, {WS_CNT}, v9
    v_mov_b32 v100, 0
    v_mov_b32 v101, 0
    v_mov_b32 v102, 0
    v_mov_b32 v103, 0
    s_barrier                 ; B_init
    s_cmp_lg_u32 s2, 0
    s_cbranch_scc1 M_NOZERO
    s_movk_i32 s36, 4096
    s_movk_i32 s37, 8192
    """)
    for i in range(12):
        a(f"buffer_store_dwordx4 v[100:103], v9, {WSS}, {['0','s36','s37'][i>>2]} offen offset:{1024*(i&3)} {SCS}")
    a(f"""
    v_mov_b32 v10, 1
    s_waitcnt vmcnt(0)
    s_mov_b64 exec, 1
    buffer_store_dword v10, v100, {DBS}, 0 offen sc1
    s_mov_b64 exec, -1
    M_NOZERO:
    """)
    if os.environ.get("XG") == "1": lds_wait(5, n=4)
    for p in range(2):
        for i in range(5):
            a(f"buffer_load_dwordx4 {vr(16+20*p+4*i,4)}, v{1+p}, s[16:19], 0 offen offset:{i*256}")
    lds_wait(5, n=4)
    poll(DBS, 100, "1", 1, sleep=2)
    lds_set(3)
    a("v_cmp_eq_u32 vcc, 0, v6")
    for p in range(2):
        for i in range(20):
            r = 16 + 20*p + i
            a(f"v_dot2_f32_bf16 v{100+2*p}, v{r}, s43, v{100+2*p}")
            a(f"v_dot2_f32_bf16 v{101+2*p}, v{r}, v{r}, v{101+2*p}")
    a("s_nop 2")
    for sh in (8, 4, 2, 1):
        for r in range(100, 104):
            a(f"v_add_f32_dpp v{r}, v{r}, v{r} row_ror:{sh} row_mask:0xf bank_mask:0xf")
    a(f"s_mov_b32 s44, {hexf(1.0/640)}\ns_mov_b32 s45, {hexf(1e-5)}")
    for p in range(2):
        sm, sq = 100+2*p, 101+2*p
        a(f"""
        v_mul_f32 v{sm}, s44, v{sm}
        v_mul_f32 v{sq}, s44, v{sq}
        v_fma_f32 v{sq}, -v{sm}, v{sm}, v{sq}
        v_max_f32 v{sq}, 0, v{sq}
        v_add_f32 v{sq}, s45, v{sq}
        v_rsq_f32 v{sq}, v{sq}
        s_nop 0
        v_mul_f32 v{sm}, v{sm}, v{sq}
        v_sub_f32 v{sm}, 0, v{sm}
        v_cndmask_b32 v{sm}, v{sm}, v{sq}, vcc
        buffer_store_dword v{sm}, v5, {WSS}, 0 offen offset:{16*p} {SC}
        """)
    a(f"""
    M_UPDONE:
    s_waitcnt vmcnt(0)
    """)
    mstamp(2)
    lds_last(2, 4, "M_UPNA")
    a("v_lshlrev_b32 v1, 4, v0")
    lds_wait(3)
    mstamp(3)
    arrive_s1b()
    lds_set(4)
    a(f"s_cmp_ge_u32 s{RID}, {NCONV}\ns_cbranch_scc1 M_PACK")
    pollflag(1)
    mstamp(4)
    a(f"""
    s_mov_b32 s36, {WS_R1}
    s_lshl_b32 s37, s{RID}, 14
    s_add_u32 s37, s37, {WS_XT}
    """)
    for blk in range(8):
        src = 36 if blk < 4 else 37
        a(f"s_mov_b32 m0, {ST_LDS2 + blk*4096}\ns_nop 0")
        for i in range(4):
            a(f"buffer_load_dwordx4 v1, {WSS}, s{src} offen offset:{1024*i} {SC} lds")
        a(f"s_add_u32 s{src}, s{src}, 4096")
    a("s_waitcnt vmcnt(0)")
    mstamp(5)
    a("s_barrier                 ; B_c\ns_barrier                 ; B_d")
    pollflag(2)
    mstamp(6)
    a(f"""
    s_branch M_P2
    M_UPNA:
    s_cmp_ge_u32 s{RID}, {NCONV}
    s_cbranch_scc1 M_PACK
    s_barrier
    s_barrier
    s_branch M_P2
    """)
    a(f"""
    M_PACK:
    s_sub_u32 s28, s{RID}, {NCONV}
    s_lshl_b32 s28, s28, 3
    s_add_u32 s28, s28, s3                 ; slot j 0..767
    v_lshlrev_b32 v1, 4, v0
    v_lshrrev_b32 v3, 4, v0
    s_lshl_b32 s30, s3, 13
    s_mov_b32 s19, 0x20000
    s_mov_b32 s23, 0x20000
    v_and_b32 v28, 1, v3
    v_lshlrev_b32 v28, 12, v28
    v_lshrrev_b32 v29, 1, v3
    v_bfe_u32 v30, v0, 2, 2
    v_lshl_add_u32 v29, v29, 3, v30
    v_lshl_add_u32 v28, v29, 7, v28
    v_and_b32 v29, 3, v0
    v_lshl_add_u32 v28, v29, 3, v28
    v_add_u32 v28, s30, v28
    v_lshlrev_b32 v29, 2, v0
    v_cmp_gt_u32 vcc, 32, v0
    v_mov_b32 v30, 0x40000000
    v_lshrrev_b32 v31, 3, v0
    v_cndmask_b32 v29, v30, v29, vcc
    v_lshrrev_b32 v26, 5, v0
    v_and_b32 v27, 7, v0
    s_sub_u32 s45, s28, 480
    s_cmp_ge_u32 s28, 480
    """)
    SB = 52
    a("\n".join([sel(44,"s45","s28"), sel(45,10,24), sel(46,(65536+9)//10,(65536+23)//24),
                 sel(47,64*1280,32*3072), sel(48,1280,3072), sel(49,4,0),
                 sel(50,16*1280,8*3072), sel(51,5,6), sel(SB+4,5120,6144),
                 sel(60,48,40), sel(61,WS_WP2,WS_WP1), sel(62,(65536+4)//5,(65536+5)//6),
                 f"s_cselect_b32 s16, s{P_WD}, s{P_WG}\ns_cselect_b32 s17, s{P_WD+1}, s{P_WG+1}\ns_cselect_b32 s20, s{P_WD}, s{P_WU}\ns_cselect_b32 s21, s{P_WD+1}, s{P_WU+1}",
                 sel(31,5120,0), sel(32,0x40000000,WS_CS)]))
    a(f"""
    s_cmp_lt_u32 s28, {0 if os.environ.get('E3') else 720}
    s_cselect_b32 s18, {D*F*2}, 0
    s_cselect_b32 s33, 0, 0x40000000
    s_mov_b32 s22, s18
    s_add_u32 s61, s61, s33
    s_mul_i32 s46, s44, s46
    s_lshr_b32 s46, s46, 16
    s_mul_i32 s45, s46, s45
    s_sub_u32 s45, s44, s45
    s_mul_i32 s47, s46, s47
    s_lshl_b32 s33, s45, 7
    s_add_u32 s47, s47, s33
    v_mad_u32_u24 v25, v26, s49, v31
    v_mul_u32_u24 v25, s48, v25
    v_lshl_add_u32 v25, v27, 4, v25
    s_add_u32 s31, s31, s47
    """)
    lds_wait(4)
    lds_wait(1)
    for q in range(8):
        sr = 47 if q < 4 else 31
        a(f"s_add_u32 m0, s30, {q*1024}\ns_nop 0\nbuffer_load_dwordx4 v25, s[{16+4*(q>>2)}:{19+4*(q>>2)}], s{sr} offen lds\ns_add_u32 s{sr}, s{sr}, s50")
    for b in range(4):
        a(f"""
        s_lshl_b32 s33, s45, 2
        s_add_u32 s33, s33, {b}
        s_mul_i32 s34, s33, s62
        s_lshr_b32 s34, s34, 16
        s_mul_i32 s35, s34, s51
        s_sub_u32 s35, s33, s35
        s_mul_i32 s34, s34, s60
        s_lshl_b32 s33, s46, 1
        s_add_u32 s34, s34, s33
        s_mul_i32 s34, s34, s51
        s_add_u32 s34, s34, s35
        s_lshl_b32 s34, s34, 10
        s_add_u32 s{SB+b}, s34, s61
        """)
    a(f"s_mul_i32 s33, s46, 12288\ns_lshl_b32 s34, s45, 9\ns_add_u32 s33, s33, s34\ns_add_u32 s{SB+5}, s33, s32")
    a("s_waitcnt vmcnt(0)")
    mstamp(3)
    R0 = 32
    for aa in range(2):
        for b in range(4):
            R = R0 + 4*(aa*4+b)
            for x in range(2):
                a(f"ds_read_b64_tr_b16 {vr(R+2*x,2)}, v28 offset:{aa*2048 + x*512 + b*32}")
    C0 = 16
    for b in range(4): a(f"v_mov_b32 v{C0+b}, 0")
    a("s_waitcnt lgkmcnt(0)")
    for aa in range(2):
        for b in range(4):
            R = R0 + 4*(aa*4+b)
            a(f"buffer_store_dwordx4 {vr(R,4)}, v1, {WSS}, s{SB+b} offen {SC}")
            if aa == 0: a(f"s_add_u32 s{SB+b}, s{SB+b}, s{SB+4}")
            for e in range(4):
                a(f"v_dot2_f32_bf16 v{C0+b}, v{R+e}, s43, v{C0+b}")
    a("s_nop 2")
    for b in range(4): a(f"v_mov_b32 v{C0+4+b}, v{C0+b}")
    a("s_nop 1")
    for b in range(4): a(f"v_permlane32_swap_b32 v{C0+b}, v{C0+4+b}")
    a("s_nop 1")
    for b in range(4): a(f"v_add_f32 v{C0+b}, v{C0+b}, v{C0+4+b}")
    for b in range(4): a(f"buffer_store_dword v{C0+b}, v29, {WSS}, s{SB+5} offen offset:{128*b} {SC}")
    a("s_waitcnt vmcnt(0)")
    mstamp(4)
    a(f"""
    s_barrier                  ; B_2
    s_cmp_lg_u32 s3, 0
    s_cbranch_scc1 M_P2
    v_mov_b32 v4, {128+C2A}
    """)
    pollflag(1)
    arrive(WSS, C2AW, 256-NCONV, FLG + 8, 256)
    pollflag(2)
    a("M_P2:\ns_barrier                  ; B_e")
    from mega34 import p34
    p34()
    a("M_END:")
    a.end(name, 256, 102)
    a("M_CODE_END:")
    a.launches.append(f"; @launch grid=(256,1,1) block=(512,1,1) lds={LDS_TOTAL}")
```

```python
from gen_common import *
KNAME = "sequential_preLN__ssm_conv_h3__glu_gated_reglu__prompt_kernel"

WS_CNT = 0x7E0000
P_X, P_K, P_V, P_SK, P_F, P_D, P_WG, P_WU, P_WD, P_OUT, P_DBG, P_WS = 64, 66, 68, 70, 72, 74, 78, 80, 82, 84, 86, 88
WSR, DBR = 92, 96
WSS = f"s[{WSR}:{WSR+3}]"; DBS = f"s[{DBR}:{DBR+3}]"
SC = os.environ.get("SCD", "sc1")
SCS = "sc1"
C1B, C2A = 80, 96
C2B = WS_CNT; R2B = WS_CNT + 10*128; C3 = WS_CNT + 26*128; R3 = WS_CNT + 42*128
NCONV = 160
CSA = WS_CNT + 12288
SPA = WS_CNT + 24576
FLG = WS_CNT + 40960
FLG1 = WS_CNT + 0x14000
S1C = WS_CNT + 64*128
G1B = WS_CNT + 0x1C000
C1BW = WS_CNT + 80*128
C2AW = WS_CNT + 81*128
RID = 90
FC_STRIDE = 4160
U0_OFF = 4 * FC_STRIDE
U1_OFF = U0_OFF + 4640
IMG = 26112
ST_LDS2 = 4 * IMG
XT_LDS = ST_LDS2 + 16384
STG = 41216
HOFF = 24832
CS_LDS = 3 * STG
ST_LDS = CS_LDS + 1024
HT_LDS = ST_LDS + 16384
SY_LDS = HT_LDS + 12288
LDS_TOTAL = SY_LDS + 64 + 1024

_ts = [0]
def mstamp(slot):
    if not TIMING: return
    a(f"s_memrealtime s[100:101]\ns_waitcnt lgkmcnt(0)\nv_writelane_b32 v255, s100, {slot}")
def mflush():
    if not TIMING: return
    a(f"""
    s_waitcnt vmcnt(0)
    s_memrealtime s[100:101]
    s_waitcnt lgkmcnt(0)
    v_writelane_b32 v255, s100, 15
    s_lshl_b32 s100, s2, 3
    s_add_u32 s100, s100, s3
    s_lshl_b32 s100, s100, 6
    s_add_u32 s100, s100, {WS_TS}
    v_mbcnt_lo_u32_b32 v254, -1, 0
    v_mbcnt_hi_u32_b32 v254, -1, v254
    v_lshlrev_b32 v254, 2, v254
    s_mov_b64 exec, 0xffff
    buffer_store_dword v255, v254, {WSS}, s100 offen
    s_mov_b64 exec, -1
    """)

def arr_begin(srd_, cnt_off, n, L, vt=248):
    a(f"""
    v_mov_b32 v{vt}, {cnt_off}
    v_mov_b32 v{vt+1}, 1
    s_mov_b64 exec, 1
    buffer_atomic_add v{vt+1}, v{vt}, {srd_}, 0 offen sc0 sc1
    s_waitcnt vmcnt(0)
    v_readfirstlane_b32 s4, v{vt+1}
    s_mov_b64 exec, -1
    s_cmp_lg_u32 s4, {n-1}
    s_cbranch_scc1 {L}
    """)
def release(rel_off, nrel, vt=248):
    a(f"""
    v_mov_b32 v{vt+3}, 1
    v_lshlrev_b32 v{vt+2}, 7, v0
    v_add_u32 v{vt+2}, {rel_off}, v{vt+2}
    """)
    if nrel < 64: a(f"s_mov_b64 exec, {hex((1 << nrel) - 1) if nrel < 32 else '0x7fffffff'}")
    if nrel == 32: a("s_bitset1_b64 exec, 31")
    for i in range(max(1, nrel // 64)):
        if i: a(f"v_add_u32 v{vt+2}, 8192, v{vt+2}")
        a(f"buffer_store_dword v{vt+3}, v{vt+2}, {WSS}, 0 offen sc1")
    a("s_mov_b64 exec, -1")
def arrive(srd_, cnt_off, n, rel_off, nrel=1, vt=248):
    L = a.label("ARR")
    arr_begin(srd_, cnt_off, n, L, vt)
    release(rel_off, nrel, vt)
    a(f"{L}:")
def lds_last(word, n, Lnot, vt=246):
    a(f"""
    v_mov_b32 v{vt}, {SY_LDS + 4*word}
    v_mov_b32 v{vt+1}, 1
    s_mov_b64 exec, 1
    ds_add_rtn_u32 v{vt+1}, v{vt}, v{vt+1}
    s_waitcnt lgkmcnt(0)
    v_readfirstlane_b32 s4, v{vt+1}
    s_mov_b64 exec, -1
    s_cmp_lg_u32 s4, {n-1}
    s_cbranch_scc1 {Lnot}
    """)
def lds_add(word, vt=246):
    a(f"""
    v_mov_b32 v{vt}, {SY_LDS + 4*word}
    v_mov_b32 v{vt+1}, 1
    s_mov_b64 exec, 1
    ds_add_u32 v{vt}, v{vt+1}
    s_mov_b64 exec, -1
    """)
def lds_set(word, vt=246):
    a(f"""
    v_mov_b32 v{vt}, {SY_LDS + 4*word}
    v_mov_b32 v{vt+1}, 1
    ds_write_b32 v{vt}, v{vt+1}
    """)
def lds_wait(word, vt=246, n=1):
    L = a.label("LW")
    a(f"""
    v_mov_b32 v{vt}, {SY_LDS + 4*word}
    s_mov_b32 s4, 0
    {L}:
    ds_read_b32 v{vt+1}, v{vt}
    s_add_u32 s4, s4, 1
    s_waitcnt lgkmcnt(0)
    v_cmp_gt_u32 vcc, {n}, v{vt+1}
    s_cmp_gt_u32 s4, 0x400000
    s_cbranch_scc1 {L}_x
    s_cbranch_vccnz {L}
    {L}_x:
    """)
def pollflag(word, sleep=0):
    a(f"s_lshl_b32 s4, s2, 7\ns_add_u32 s4, s4, {FLG + 4*word}\nv_mov_b32 v247, s4")
    poll(WSS, 247, "1", 1, sleep)
def pollrep(word):
    a(f"s_and_b32 s4, s2, 15\ns_lshl_b32 s4, s4, 7\ns_add_u32 s4, s4, {R2B + 4*word}\nv_mov_b32 v247, s4")
    poll(WSS, 247, "1", 1, 1)
def arrive_s1():
    a(f"""
    s_lshr_b32 s38, s2, 5
    s_lshl_b32 s39, s38, 12
    s_add_u32 s39, s39, {FLG1}
    s_and_b32 s4, s38, 3
    s_lshl_b32 s4, s4, 4
    s_lshr_b32 s38, s38, 2
    s_lshl_b32 s38, s38, 7
    s_add_u32 s38, s38, s4
    """)
    mstamp(13)
    arrive(DBS, "s38", 32, "s39", 32)
    mstamp(14)
    a(f"s_lshl_b32 s4, s2, 7\ns_add_u32 s4, s4, {FLG1}\nv_mov_b32 v247, s4")
    poll(WSS, 247, "1", 1)
def arrive_s1b():
    L = a.label("ARR")
    a(f"s_lshr_b32 s38, s2, 5\ns_lshl_b32 s38, s38, 10\ns_add_u32 s38, s38, {G1B}")
    arr_begin(WSS, "s38", 32, L)
    arr_begin(DBS, 64, 8, L)
    release(FLG1 + 4, 256)
    a(f"{L}:")
def poll(srd_, vaddr, execmask, target, sleep=0, vt=252):
    L = a.label("POLL")
    a(f"""
    s_mov_b64 exec, {execmask}
    s_mov_b32 s4, 0
    {L}:
    buffer_load_dword v{vt}, v{vaddr}, {srd_}, 0 offen {SCS}
    s_add_u32 s4, s4, 1
    s_waitcnt vmcnt(0)
    v_cmp_gt_u32 vcc, {target}, v{vt}
    s_cmp_gt_u32 s4, 0x40000
    s_cbranch_scc1 {L}_x
    """)
    if sleep: a(f"s_sleep {sleep}")
    a(f"""
    s_cbranch_vccnz {L}
    {L}_x:
    s_mov_b64 exec, -1
    """)
def sdiv(dst, src, n):
    a(f"s_mul_i32 s{dst}, s{src}, {(65536 + n - 1) // n}\ns_lshr_b32 s{dst}, s{dst}, 16")
def sel(d, t, e):
    lit = lambda x: isinstance(x, int) and not (-16 <= x <= 64)
    if lit(t) and lit(e): return f"s_mov_b32 s{d}, {e}\ns_cmov_b32 s{d}, {t}"
    return f"s_cselect_b32 s{d}, {t}, {e}"


def tile_lane_setup(tsg):
    a(f"""
    v_and_b32 v6, 31, v0
    s_lshl_b32 s38, s{tsg}, 5
    v_add_u32 v6, s38, v6                  ; p
    v_mul_u32_u24 v5, 205, v6
    v_lshrrev_b32 v5, 11, v5               ; j = p/10
    v_cmp_gt_u32 vcc, 80, v6
    v_mul_u32_u24 v4, 10, v5
    v_sub_u32 v6, v6, v4                   ; cg
    v_lshrrev_b32 v4, 5, v0                ; hi
    s_and_b32 s38, s2, 31
    s_lshl_b32 s38, s38, 6
    v_lshl_add_u32 v5, v5, 3, s38          ; S
    v_lshl_add_u32 v7, v4, 2, v5           ; s0
    s_lshr_b32 s39, s2, 5
    s_mul_i32 s39, s39, 80
    v_lshl_add_u32 v6, v6, 3, s39          ; c0
    v_mul_u32_u24 v1, 1280, v7
    v_lshl_add_u32 v1, v6, 1, v1           ; voff
    v_lshl_add_u32 v4, v4, 2, v6
    v_lshlrev_b32 v4, 12, v4
    v_mov_b32 v7, 0x80000000
    v_cndmask_b32 v1, v7, v1, vcc
    v_cndmask_b32 v4, v7, v4, vcc
    """)

def mega():
    name = KNAME
    a.begin(name)
    a(f"""
    s_cmp_ge_u32 s2, 256
    s_cbranch_scc1 M_END
    s_load_dwordx16 s[64:79], s[0:1], 0
    s_load_dwordx8 s[80:87], s[0:1], 64
    s_load_dwordx2 s[88:89], s[0:1], 96
    v_lshrrev_b32 v1, 6, v0
    v_and_b32 v0, 63, v0
    v_readfirstlane_b32 s3, v1
    s_mov_b32 s40, 0xffff0000
    s_mov_b32 s43, 0x3f803f80
    s_mov_b32 s{WSR+2}, {WS_TS + 0x40000 if TIMING else WS_END}
    s_mov_b32 s{WSR+3}, 0x20000
    s_mov_b32 s{DBR+2}, 256
    s_mov_b32 s{DBR+3}, 0x20000
    s_and_b32 s5, s3, 3
    s_lshr_b32 s6, s2, 5                   ; g
    s_and_b32 s7, s6, 1
    s_lshl_b32 s7, s7, 2
    s_add_u32 s7, s7, s2
    s_and_b32 s7, s7, 31                   ; r
    s_mul_i32 s8, s6, 20
    s_add_u32 s8, s8, s7
    s_mul_i32 s9, s6, 12
    s_add_u32 s9, s9, s7
    s_add_u32 s9, s9, 140
    s_cmp_lt_u32 s7, 20
    s_cselect_b32 s{RID}, s8, s9
    """)
    if TIMING: a("v_mov_b32 v255, 0")
    mstamp(0)
    tile_lane_setup(5)
    a(f"""
    s_cmp_ge_u32 s3, 4
    s_cbranch_scc1 M_UPPER
    """)
    a(f"""
    v_add_u32 v2, -3840, v1
    v_lshlrev_b32 v3, 3, v6
    s_lshl_b32 s28, s{RID}, 2
    s_add_u32 s28, s28, s3
    s_cmp_lt_u32 s{RID}, {NCONV}
    s_cselect_b32 s28, s28, 0
    s_cselect_b32 s18, 4096, 0
    s_lshl_b32 s29, s28, 12
    v_lshlrev_b32 v190, 4, v0
    v_add_u32 v191, -8, v190
    v_add_u32 v192, 1016, v190
    s_waitcnt lgkmcnt(0)
    """)
    srd(20, P_K, NB_SD); srd(24, P_V, NB_SD); srd(32, P_SK, D*8)
    for i in range(3):
        a(f"buffer_load_dwordx4 {vr(8+4*i,4)}, v2, s[20:23], 0 offen offset:{i*1280}")
    for i in range(4):
        a(f"buffer_load_dwordx4 {vr(20+4*i,4)}, v1, s[20:23], 0 offen offset:{i*1280}")
    for i in range(4):
        a(f"buffer_load_dwordx4 {vr(36+4*i,4)}, v1, s[24:27], 0 offen offset:{i*1280}")
    for i in range(4):
        a(f"buffer_load_dwordx4 {vr(68+4*i,4)}, v3, s[32:35], 0 offen offset:{i*16}")
    a(f"""
    s_add_u32 s16, s{P_F}, s29
    s_addc_u32 s17, s{P_F+1}, 0
    s_mov_b32 s19, 0x20000
    s_mov_b32 s{WSR}, s{P_WS}
    s_mov_b32 s{WSR+1}, s{P_WS+1}
    s_mov_b32 s{DBR}, s{P_DBG}
    s_mov_b32 s{DBR+1}, s{P_DBG+1}
    s_lshl_b32 s8, s2, 7
    s_add_u32 s8, s8, {FLG1}
    s_lshl_b32 s9, s6, 7
    s_add_u32 s9, s9, {G1B}
    s_and_b32 s10, s2, 31
    s_cmp_eq_u32 s10, 0
    s_mov_b32 s9, 0x40000000
    v_mov_b32 v198, s8
    v_mov_b32 v199, s9
    v_cmp_eq_u32 vcc, 0, v0
    v_mov_b32 v194, 0
    v_mov_b32 v195, 0
    v_mov_b32 v196, 0
    v_mov_b32 v197, 0
    v_cndmask_b32 v198, v199, v198, vcc
    s_cmp_eq_u32 s3, 3
    s_cselect_b32 s10, 0, 0x40000000
    s_mov_b64 exec, 3
    buffer_store_dwordx4 v[194:197], v198, {WSS}, s10 offen sc1
    s_mov_b64 exec, -1
    """)
    E = 200
    FD = True
    def floads():
        for i in range(4):
            a(f"buffer_load_dwordx4 {vr(E+6*i+2,4)}, v190, s[16:19], 0 offen offset:{1024*i}")
            if i == 0: a(f"buffer_load_dwordx2 {vr(E,2)}, v191, s[16:19], 0 offen")
            else: a(f"buffer_load_dwordx2 {vr(E+6*i,2)}, v192, s[16:19], 0 offen offset:{1024*(i-1)}")
    if not FD: floads()
    a(f"""
    v_sub_u32 v5, 2040, v5
    v_lshl_add_u32 v5, v5, 1, v4
    s_and_b32 s36, s28, 0xfffffffe
    s_lshl_b32 s36, s36, 1
    s_load_dword s37, s[{P_D}:{P_D+1}], s36
    s_mul_i32 s30, s3, {IMG}
    v_add_u32 v193, s30, v190
    v_mov_b32 v194, 0
    v_mov_b32 v195, 0
    v_mov_b32 v196, 0
    v_mov_b32 v197, 0
    s_mov_b64 exec, 7
    """)
    for c in range(4): a(f"ds_write_b128 v193, v[194:197] offset:{c*FC_STRIDE}")
    a("s_mov_b64 exec, 0xfffffff")
    a(f"ds_write_b128 v193, v[194:197] offset:{U0_OFF+4096}")
    a(f"ds_write_b128 v193, v[194:197] offset:{U1_OFF+4096}")
    a("s_mov_b64 exec, -1")
    a(f"""
    v_mov_b32 v198, {SY_LDS}
    ds_write_b128 v198, v[194:197]
    ds_write_b128 v198, v[194:197] offset:16
    ds_write_b128 v198, v[194:197] offset:32
    s_waitcnt lgkmcnt(0)
    s_barrier                 ; B_init
    s_waitcnt vmcnt({0 if FD else 8})
    """)
    mstamp(1)
    lds_add(5)
    a("s_cmp_eq_u32 s3, 3\ns_cbranch_scc1 M_SKIPKV")
    Q = 144
    def xreg(e):
        return Q + 4*(e & 3) + (2 if e < 4 else 0)
    for jj, j in enumerate((0, 2, 1, 3)):
        wa0, wa1, wb0, wb1 = 68+4*j, 68+4*j+1, 68+4*j+2, 68+4*j+3
        a(f"""
        v_lshlrev_b32 v106, 16, v{wa0}
        v_lshlrev_b32 v107, 16, v{wb0}
        v_and_b32 v108, s40, v{wa0}
        v_and_b32 v109, s40, v{wb0}
        v_lshlrev_b32 v110, 16, v{wa1}
        v_lshlrev_b32 v111, 16, v{wb1}
        v_and_b32 v112, s40, v{wa1}
        v_and_b32 v113, s40, v{wb1}
        """)
        for i in range(7):
            a(f"v_lshlrev_b32 v{84+2*i}, 16, v{8+4*i+j}")
            a(f"v_and_b32 v{85+2*i}, s40, v{8+4*i+j}")
        for i in range(4):
            a(f"v_lshlrev_b32 v{98+2*i}, 16, v{36+4*i+j}")
            a(f"v_and_b32 v{99+2*i}, s40, v{36+4*i+j}")
        for rho in range(4):
            acc = 114 + 2*rho
            a(f"v_pk_mul_f32 {vr(acc,2)}, {vr(84+2*(rho+3),2)}, {vr(106,2)}")
            for t in range(1, 4):
                a(f"v_pk_fma_f32 {vr(acc,2)}, {vr(84+2*(rho+3-t),2)}, {vr(106+2*t,2)}, {vr(acc,2)}")
        for rho in range(4):
            acc = 114 + 2*rho
            a(f"v_pk_mul_f32 {vr(acc,2)}, {vr(acc,2)}, {vr(98+2*rho,2)}")
        for h in range(2):
            o = xreg(2*j + h)
            a(f"v_cvt_pk_bf16_f32 v{o}, v{114+6+h}, v{114+4+h}")
            a(f"v_cvt_pk_bf16_f32 v{o+1}, v{114+2+h}, v{114+0+h}")
        if jj & 1:
            a("s_nop 1")
            for e in (2*(j-2), 2*(j-2)+1):
                a(f"v_permlane32_swap_b32 v{xreg(e)}, v{xreg(e+4)}")
                a(f"v_permlane32_swap_b32 v{xreg(e)+1}, v{xreg(e+4)+1}")
                a(f"s_mov_b32 s41, {WS_UR + e*4096}")
                a(f"buffer_store_dwordx4 {vr(Q+4*e,4)}, v5, {WSS}, s41 offen {SC}")
    floads()
    a("s_waitcnt vmcnt(8)")
    mstamp(2)
    lds_add(0)
    a("s_branch M_KVDONE\nM_SKIPKV:")
    floads()
    a(f"""
    M_KVDONE:
    s_cmp_ge_u32 s{RID}, {NCONV}
    s_cbranch_scc1 M_LOWNC
    """)
    T = 80
    for i in range(4):
        e = E + 6*i; t = T + 12*(i & 1)
        a(f"s_waitcnt vmcnt({8 - 2*(i+1)})")
        a(f"ds_write_b128 v193, {vr(e+2,4)} offset:{3*FC_STRIDE+48+1024*i}")
        for j in range(4): a(f"v_alignbit_b32 v{t+j}, v{e+j+1}, v{e+j}, 16")
        a(f"ds_write_b128 v193, {vr(t,4)} offset:{48+1024*i}")
        for j in range(4): a(f"v_alignbit_b32 v{t+4+j}, v{e+j+2}, v{e+j+1}, 16")
        a(f"ds_write_b128 v193, {vr(t+4,4)} offset:{2*FC_STRIDE+48+1024*i}")
        for j in range(4): a(f"v_mov_b32 v{t+8+j}, v{e+j+1}")
        a(f"ds_write_b128 v193, {vr(t+8,4)} offset:{FC_STRIDE+48+1024*i}")
    a(f"""
    v_mov_b32 v1, v190
    v_and_b32 v2, 15, v0
    v_lshrrev_b32 v3, 4, v0
    v_add_u32 v6, 8, v1
    v_and_b32 v8, 1, v2
    v_lshlrev_b32 v8, 2, v8
    v_lshrrev_b32 v9, 1, v2
    v_lshl_add_u32 v8, v9, 5, v8
    v_lshl_add_u32 v8, v3, 3, v8           ; P0'
    v_lshlrev_b32 v12, 1, v8
    v_lshlrev_b32 v13, 2, v8
    v_add_u32 v13, {ST_LDS2}, v13
    s_lshl_b32 s31, s3, 12
    s_add_u32 s31, s31, {XT_LDS}
    v_add_u32 v7, s31, v12
    v_and_b32 v9, 3, v2
    v_mul_u32_u24 v9, {FC_STRIDE}, v9
    v_lshrrev_b32 v10, 2, v2
    v_add_u32 v10, v10, v3
    v_lshl_add_u32 v14, v10, 4, v9
    v_add_u32 v14, s30, v14                ; A addr
    v_and_b32 v9, 1, v2
    v_mul_u32_u24 v9, {U1_OFF-U0_OFF}, v9
    v_lshrrev_b32 v10, 1, v2
    v_lshlrev_b32 v10, 2, v10
    v_sub_u32 v10, v3, v10
    v_add_u32 v10, 28, v10
    v_lshl_add_u32 v15, v10, 4, v9
    s_add_u32 s32, s30, {U0_OFF}
    v_add_u32 v15, s32, v15                ; B addr
    v_sub_u32 v11, {2044-1792}, v8
    v_lshlrev_b32 v11, 1, v11
    s_add_u32 s32, s30, {U1_OFF}
    v_add_u32 v11, s32, v11
    s_add_u32 s20, s{P_WS}, s29
    s_addc_u32 s21, s{P_WS+1}, 0
    s_mov_b32 s22, 4096
    s_mov_b32 s23, 0x20000
    s_mul_i32 s41, s28, {HS}
    s_add_u32 s41, s41, {WS_HT}
    s_add_u32 m0, s30, {U1_OFF}
    """)
    ACC = 16
    for i in range(32): a(f"v_mov_b32 v{ACC+i}, 0")
    BUF = [48, 112]
    a("s_waitcnt lgkmcnt(0)")
    for i in range(8): a(f"ds_read_b128 {vr(BUF[0]+4*i,4)}, v14 offset:{512*i}")
    a("s_cmp_lg_u32 s3, 3\ns_cbranch_scc1 M_NOS1")
    lds_wait(0, n=4)
    arrive_s1()
    lds_set(1)
    a("s_branch M_S1OK\nM_NOS1:")
    lds_wait(1)
    a("M_S1OK:")
    mstamp(3)
    for i in range(4):
        a(f"buffer_load_dwordx4 v1, s[20:23], 0 offen offset:{1024*i} {SC} lds")
    a(f"s_add_u32 m0, s30, {U0_OFF}\ns_nop 0")
    for i in range(4):
        a(f"buffer_load_dwordx4 v6, s[20:23], 0 offen offset:{1024*i} {SC} lds")
    a("s_waitcnt vmcnt(0)")
    mstamp(4)
    lds_add(7)
    def reads(buf, nu):
        A = [f"ds_read_b128 {vr(BUF[buf]+4*i,4)}, v14 offset:{512*i+64*nu}" for i in range(8)]
        B = [f"ds_read_b128 {vr(BUF[buf]+32+4*i,4)}, v15 offset:{512*(7-i)+64*nu}" for i in range(8)]
        return [A[0]] + B + A[1:]
    def mfmas(buf):
        out = []
        for mu in range(8):
            for tau in range(8-mu):
                t = mu + tau
                out.append(f"v_mfma_f32_16x16x32_bf16 {vr(ACC+4*t,4)}, {vr(BUF[buf]+4*mu,4)}, {vr(BUF[buf]+32+4*tau,4)}, {vr(ACC+4*t,4)}")
        return out
    for i in range(8): a(f"ds_read_b128 {vr(BUF[0]+32+4*i,4)}, v15 offset:{512*(7-i)}")
    a("s_mov_b32 s46, 0")
    a("M2_LOOP:")
    for half in range(2):
        a("s_waitcnt lgkmcnt(0)")
        rs = reads(1-half, half+1)
        ms = mfmas(half)
        for i, m in enumerate(ms):
            a(m)
            if i % 2 == 0 and rs: a(rs.pop(0))
            if half == 1 and i == 33:
                a("v_add_u32 v14, 128, v14\nv_add_u32 v15, 128, v15\ns_add_u32 s46, s46, 1\ns_cmp_lt_u32 s46, 4")
    a("s_cbranch_scc1 M2_LOOP")
    a("s_waitcnt lgkmcnt(0)")
    mstamp(5)
    UR_, RR, CR, XR = 48, 64, 96, 160
    for t in range(8): a(f"ds_read_b64 {vr(UR_+2*t,2)}, v11 offset:{512*(7-t)}")
    lds_wait(8)
    for t in range(8):
        a(f"ds_read_b64 {vr(XR+2*t,2)}, v7 offset:{512*t}")
        a(f"ds_read_b128 {vr(RR+4*t,4)}, v13 offset:{1024*t}")
        a(f"ds_read_b128 {vr(CR+4*t,4)}, v13 offset:{8192+1024*t}")
    a(f"""
    s_lshl_b32 s36, s28, 4
    s_and_b32 s36, s36, 16
    s_lshr_b32 s37, s37, s36
    s_lshl_b32 s37, s37, 16
    """)
    for t in range(8):
        a(f"s_waitcnt lgkmcnt({min(15, 3*(7-t))})")
        u0, u1 = UR_+2*t, UR_+2*t+1
        x0, x1 = XR+2*t, XR+2*t+1
        Tt = 128 + 16*(t & 1)
        a(f"""
        v_and_b32 v{Tt+0}, s40, v{u1}
        v_lshlrev_b32 v{Tt+1}, 16, v{u1}
        v_and_b32 v{Tt+2}, s40, v{u0}
        v_lshlrev_b32 v{Tt+3}, 16, v{u0}
        v_lshlrev_b32 v{Tt+4}, 16, v{x0}
        v_and_b32 v{Tt+5}, s40, v{x0}
        v_lshlrev_b32 v{Tt+6}, 16, v{x1}
        v_and_b32 v{Tt+7}, s40, v{x1}
        """)
        for j in range(4):
            a(f"v_fmac_f32 v{ACC+4*t+j}, s37, v{Tt+j}")
        for j in (0, 2):
            a(f"v_pk_fma_f32 {vr(Tt+8+j,2)}, {vr(Tt+4+j,2)}, {vr(RR+4*t+j,2)}, {vr(CR+4*t+j,2)}")
        for j in (0, 2):
            a(f"v_pk_fma_f32 {vr(Tt+j,2)}, {vr(ACC+4*t+j,2)}, {vr(Tt+8+j,2)}, {vr(Tt+4+j,2)}")
        a(f"""
        v_cvt_pk_bf16_f32 v{Tt+12}, v{Tt+0}, v{Tt+1}
        v_cvt_pk_bf16_f32 v{Tt+13}, v{Tt+2}, v{Tt+3}
        buffer_store_dwordx2 {vr(Tt+12,2)}, v12, {WSS}, s41 offen offset:{512*t} {SC}
        """)
    a("s_waitcnt vmcnt(0)")
    mstamp(6)
    lds_last(6, 4, "M_NOS2")
    a(f"""
    s_lshr_b32 s38, s{RID}, 4
    s_lshl_b32 s39, s38, 2
    s_add_u32 s39, s39, {R2B}
    s_lshl_b32 s38, s38, 7
    s_add_u32 s38, s38, {C2B}
    """)
    arrive(WSS, "s38", 16, "s39", 16)
    a("M_NOS2:\ns_branch M_P2")
    a(f"""
    M_LOWNC:
    s_cmp_lg_u32 s3, 3
    s_cbranch_scc1 M_PACK
    """)
    lds_wait(0, n=4)
    arrive_s1()
    lds_set(1)
    a("s_branch M_PACK")
    a(f"""
    M_UPPER:
    s_mov_b32 s41, 0x05040100
    s_mov_b32 s42, 0x07060302
    v_lshl_add_u32 v4, v5, 1, v4
    s_waitcnt lgkmcnt(0)
    s_mov_b32 s{WSR}, s{P_WS}
    s_mov_b32 s{WSR+1}, s{P_WS+1}
    s_mov_b32 s{DBR}, s{P_DBG}
    s_mov_b32 s{DBR+1}, s{P_DBG+1}
    """)
    srd(16, P_X, NB_SD)
    a(f"""
    s_cmp_eq_u32 s3, 7
    s_cbranch_scc1 M_STATS
    s_getpc_b64 s[44:45]
    M_PCREF:
    s_sub_u32 s44, s44, M_PCREF-{KNAME}
    s_subb_u32 s45, s45, 0
    s_lshl_b32 s46, s5, 13
    v_lshlrev_b32 v8, 7, v0
    v_add_u32 v8, s46, v8
    v_min_u32 v8, M_CODE_END-{KNAME}-4, v8
    {"global_load_dword v9, v8, s[44:45]" if os.environ.get("NOCPF") != "1" else "s_nop 0"}
    s_lshr_b32 s46, s2, 3
    s_add_u32 s46, s46, s5
    s_and_b32 s46, s46, 7
    s_lshl_b32 s46, s46, 22
    v_lshlrev_b32 v10, 16, v0
    {f"buffer_load_dword v11, v10, {WSS}, s46 offen sc1" if os.environ.get("TLB") == "1" else "s_nop 0"}
    s_barrier                 ; B_init
    """)
    if os.environ.get("XG") == "1": lds_wait(5, n=4)
    for i in range(4):
        a(f"buffer_load_dwordx4 {vr(52+4*i,4)}, v1, s[16:19], 0 offen offset:{i*1280}")
    a("s_waitcnt vmcnt(0)")
    def xr2(e): return 8 + 4*(e & 3) + (0 if e < 4 else 2)
    for e in range(8):
        j, h = e >> 1, e & 1
        selr = "s41" if h == 0 else "s42"
        a(f"v_perm_b32 v{xr2(e)}, v{52+4+j}, v{52+j}, {selr}")
        a(f"v_perm_b32 v{xr2(e)+1}, v{52+12+j}, v{52+8+j}, {selr}")
    lds_wait(0, n=4)
    a("s_nop 1")
    for e in range(4):
        a(f"v_permlane32_swap_b32 v{xr2(e)}, v{xr2(e+4)}")
        a(f"v_permlane32_swap_b32 v{xr2(e)+1}, v{xr2(e+4)+1}")
        a(f"s_mov_b32 s44, {WS_XT + e*4096}")
        a(f"buffer_store_dwordx4 {vr(8+4*e,4)}, v4, {WSS}, s44 offen {SC}")
    a("s_branch M_UPDONE")
    a(f"""
    M_STATS:
    s_and_b32 s36, s2, 31
    s_lshl_b32 s36, s36, 6
    s_lshr_b32 s37, s2, 5
    s_lshl_b32 s37, s37, 3
    s_add_u32 s36, s36, s37
    v_and_b32 v6, 15, v0
    v_lshrrev_b32 v7, 4, v0
    v_add_u32 v7, s36, v7
    v_mul_u32_u24 v1, 1280, v7
    v_lshl_add_u32 v1, v6, 4, v1
    v_add_u32 v2, 5120, v1
    v_lshlrev_b32 v5, 2, v7
    v_add_u32 v5, {WS_R1}, v5
    v_lshl_add_u32 v5, v6, 13, v5
    v_cmp_lt_u32 vcc, 1, v6
    v_mov_b32 v8, 0x80000000
    v_lshlrev_b32 v9, 4, v0
    v_cndmask_b32 v5, v5, v8, vcc
    v_add_u32 v9, {WS_CNT}, v9
    v_mov_b32 v100, 0
    v_mov_b32 v101, 0
    v_mov_b32 v102, 0
    v_mov_b32 v103, 0
    s_and_b32 s36, s2, 31
    s_cmp_lg_u32 s36, 0
    s_cbranch_scc1 M_NOZERO0
    s_lshr_b32 s39, s2, 5
    s_mul_i32 s36, s39, 9216
    s_add_u32 s37, s36, 4096
    s_add_u32 s38, s36, 8192
    s_lshl_b32 s39, s39, 10
    s_add_u32 s39, s39, {G1B - WS_CNT}
    """)
    for i in range(9):
        a(f"buffer_store_dwordx4 v[100:103], v9, {WSS}, {['s36','s37','s38'][i>>2]} offen offset:{1024*(i&3)} {SCS}")
    a(f"""
    buffer_store_dwordx4 v[100:103], v9, {WSS}, s39 offen {SCS}
    M_NOZERO0:
    s_barrier                 ; B_init
    s_waitcnt vmcnt(0)
    """)
    lds_add(0)
    a(f"""
    M_NOZERO:
    """)
    if os.environ.get("XG") == "1": lds_wait(5, n=4)
    for p in range(2):
        for i in range(5):
            a(f"buffer_load_dwordx4 {vr(16+20*p+4*i,4)}, v{1+p}, s[16:19], 0 offen offset:{i*256}")
    a("s_waitcnt vmcnt(0)")
    a("v_cmp_eq_u32 vcc, 0, v6")
    for p in range(2):
        for i in range(20):
            r = 16 + 20*p + i
            a(f"v_dot2_f32_bf16 v{100+2*p}, v{r}, s43, v{100+2*p}")
            a(f"v_dot2_f32_bf16 v{101+2*p}, v{r}, v{r}, v{101+2*p}")
    a("s_nop 2")
    for sh in (8, 4, 2, 1):
        for r in range(100, 104):
            a(f"v_add_f32_dpp v{r}, v{r}, v{r} row_ror:{sh} row_mask:0xf bank_mask:0xf")
    a(f"s_mov_b32 s44, {hexf(1.0/640)}\ns_mov_b32 s45, {hexf(1e-5)}")
    for p in range(2):
        sm, sq = 100+2*p, 101+2*p
        a(f"""
        v_mul_f32 v{sm}, s44, v{sm}
        v_mul_f32 v{sq}, s44, v{sq}
        v_fma_f32 v{sq}, -v{sm}, v{sm}, v{sq}
        v_max_f32 v{sq}, 0, v{sq}
        v_add_f32 v{sq}, s45, v{sq}
        v_rsq_f32 v{sq}, v{sq}
        s_nop 0
        v_mul_f32 v{sm}, v{sm}, v{sq}
        v_sub_f32 v{sm}, 0, v{sm}
        v_cndmask_b32 v{sm}, v{sm}, v{sq}, vcc
        buffer_store_dword v{sm}, v5, {WSS}, 0 offen offset:{16*p} {SC}
        """)
    a(f"""
    M_UPDONE:
    s_waitcnt vmcnt(0)
    """)
    mstamp(2)
    lds_last(2, 4, "M_UPNA")
    a("v_lshlrev_b32 v1, 4, v0")
    lds_wait(1)
    mstamp(3)
    arrive_s1b()
    lds_set(4)
    a(f"s_lshl_b32 s4, s2, 7\ns_add_u32 s4, s4, {FLG1 + 4}\nv_mov_b32 v247, s4")
    poll(WSS, 247, "1", 1)
    lds_set(3)
    a(f"s_cmp_ge_u32 s{RID}, {NCONV}\ns_cbranch_scc1 M_PACK")
    mstamp(4)
    a(f"""
    s_mov_b32 s36, {WS_R1}
    s_lshl_b32 s37, s{RID}, 14
    s_add_u32 s37, s37, {WS_XT}
    """)
    for blk in range(8):
        src = 36 if blk < 4 else 37
        a(f"s_mov_b32 m0, {ST_LDS2 + blk*4096}\ns_nop 0")
        for i in range(4):
            a(f"buffer_load_dwordx4 v1, {WSS}, s{src} offen offset:{1024*i} {SC} lds")
        a(f"s_add_u32 s{src}, s{src}, 4096")
    a("s_waitcnt vmcnt(0)")
    mstamp(5)
    lds_set(8)
    a(f"""
    s_branch M_UPC
    M_UPNA:
    s_cmp_ge_u32 s{RID}, {NCONV}
    s_cbranch_scc1 M_PACK
    M_UPC:
    """)
    def wtouch():
        return
        a(f"""
        s_and_b32 s8, s3, 3
        s_lshl_b32 s8, s8, 6
        v_add_u32 v8, s8, v0                   ; idx
        v_mul_u32_u24 v9, 171, v8
        v_lshrrev_b32 v9, 11, v9
        v_mul_u32_u24 v10, 12, v9
        v_sub_u32 v10, v8, v10
        v_mul_u32_u24 v9, 3072, v9
        v_lshl_add_u32 v9, v10, 7, v9
        v_cmp_gt_u32 vcc, 240, v8
        v_mov_b32 v10, 0x40000000
        s_lshr_b32 s8, s2, 3
        s_mul_i32 s8, s8, {20*3072}
        s_bfe_u32 s12, s2, 0x10002
        s_mul_i32 s12, s12, 1536
        s_add_u32 s8, s8, s12
        v_cndmask_b32 v9, v10, v9, vcc
        """)
        srd(16, P_WG, D*F*2); srd(20, P_WU, D*F*2)
        a("buffer_load_dword v11, v9, s[16:19], s8 offen\nbuffer_load_dword v12, v9, s[20:23], s8 offen")
    lds_wait(8)
    a(f"""
    M_W4PRE:
    s_and_b32 s8, s2, 7
    s_lshr_b32 s7, s8, 2
    s_lshl_b32 s7, s7, 3
    s_lshr_b32 s8, s2, 5
    s_add_u32 s7, s7, s8                   ; fb
    s_lshr_b32 s12, s7, 1
    s_mul_i32 s8, s12, {48*5120}
    s_add_u32 s8, s8, {WS_WP2}
    s_mul_i32 s12, s3, {6*5120}
    s_add_u32 s31, s8, s12
    v_lshlrev_b32 v4, 4, v0
    """)
    a(f"s_lshl_b32 s4, s2, 7\ns_add_u32 s4, s4, {FLG1 + 8}\nv_mov_b32 v247, s4")
    poll(WSS, 247, "1", 1, 1)
    wtouch()
    for q in range(30):
        a(f"buffer_load_dwordx4 {vr(86+4*q,4)}, v4, {WSS}, s31 offen offset:{1024*(q&3)} {SC}")
        if q & 3 == 3: a("s_add_u32 s31, s31, 4096")
    mstamp(6)
    a(f"""
    s_branch M_P2
    """)
    a(f"""
    M_PACK:
    s_sub_u32 s28, s{RID}, {NCONV}
    s_mul_i32 s33, s28, 3
    s_add_u32 s33, s33, s3
    s_add_u32 s33, s33, 480
    s_min_u32 s33, s33, 720
    s_mul_i32 s34, s28, 5
    s_add_u32 s34, s34, s3
    s_sub_u32 s34, s34, 3
    s_cmp_lt_u32 s3, 3
    s_cselect_b32 s28, s33, s34
    v_lshlrev_b32 v1, 4, v0
    v_lshrrev_b32 v3, 4, v0
    s_lshl_b32 s30, s3, 13
    s_mov_b32 s19, 0x20000
    s_mov_b32 s23, 0x20000
    v_and_b32 v28, 1, v3
    v_lshlrev_b32 v28, 12, v28
    v_lshrrev_b32 v29, 1, v3
    v_bfe_u32 v30, v0, 2, 2
    v_lshl_add_u32 v29, v29, 3, v30
    v_lshl_add_u32 v28, v29, 7, v28
    v_and_b32 v29, 3, v0
    v_lshl_add_u32 v28, v29, 3, v28
    v_add_u32 v28, s30, v28
    v_lshlrev_b32 v29, 2, v0
    v_cmp_gt_u32 vcc, 32, v0
    v_mov_b32 v30, 0x40000000
    v_lshrrev_b32 v31, 3, v0
    v_cndmask_b32 v29, v30, v29, vcc
    v_lshrrev_b32 v26, 5, v0
    v_and_b32 v27, 7, v0
    s_sub_u32 s45, s28, 480
    s_cmp_ge_u32 s28, 480
    """)
    SB = 52
    a("\n".join([sel(44,"s45","s28"), sel(45,10,24), sel(46,(65536+9)//10,(65536+23)//24),
                 sel(47,64*1280,32*3072), sel(48,1280,3072), sel(49,4,0),
                 sel(50,16*1280,8*3072), sel(51,5,6), sel(SB+4,5120,6144),
                 sel(60,48,40), sel(61,WS_WP2,0x40000000), sel(62,(65536+4)//5,(65536+5)//6),
                 f"s_cselect_b32 s16, s{P_WD}, s{P_WG}\ns_cselect_b32 s17, s{P_WD+1}, s{P_WG+1}\ns_cselect_b32 s20, s{P_WD}, s{P_WU}\ns_cselect_b32 s21, s{P_WD+1}, s{P_WU+1}",
                 sel(31,5120,0), sel(32,0x40000000,CSA)]))
    a(f"""
    s_cmp_lt_u32 s28, {0 if os.environ.get('E3') else 720}
    s_cselect_b32 s18, {D*F*2}, 0
    s_cselect_b32 s33, 0, 0x40000000
    s_mov_b32 s22, s18
    s_add_u32 s61, s61, s33
    s_mul_i32 s46, s44, s46
    s_lshr_b32 s46, s46, 16
    s_mul_i32 s45, s46, s45
    s_sub_u32 s45, s44, s45
    s_mul_i32 s47, s46, s47
    s_lshl_b32 s33, s45, 7
    s_add_u32 s47, s47, s33
    v_mad_u32_u24 v25, v26, s49, v31
    v_mul_u32_u24 v25, s48, v25
    v_lshl_add_u32 v25, v27, 4, v25
    s_add_u32 s31, s31, s47
    """)
    a(f"s_cmp_lt_u32 s3, 3\ns_cbranch_scc1 M_NOGATE")
    lds_wait(4)
    lds_wait(1)
    a("M_NOGATE:")
    for q in range(8):
        sr = 47 if q < 4 else 31
        a(f"s_add_u32 m0, s30, {q*1024}\ns_nop 0\nbuffer_load_dwordx4 v25, s[{16+4*(q>>2)}:{19+4*(q>>2)}], s{sr} offen lds\ns_add_u32 s{sr}, s{sr}, s50")
    for b in range(4):
        a(f"""
        s_lshl_b32 s33, s45, 2
        s_add_u32 s33, s33, {b}
        s_mul_i32 s34, s33, s62
        s_lshr_b32 s34, s34, 16
        s_mul_i32 s35, s34, s51
        s_sub_u32 s35, s33, s35
        s_mul_i32 s34, s34, s60
        s_lshl_b32 s33, s46, 1
        s_add_u32 s34, s34, s33
        s_mul_i32 s34, s34, s51
        s_add_u32 s34, s34, s35
        s_lshl_b32 s34, s34, 10
        s_add_u32 s{SB+b}, s34, s61
        """)
    a(f"s_lshl_b32 s34, s45, 9\ns_add_u32 s{SB+5}, s34, s32")
    a("s_waitcnt vmcnt(0)")
    mstamp(3)
    R0 = 32
    for aa in range(2):
        for b in range(4):
            R = R0 + 4*(aa*4+b)
            for x in range(2):
                a(f"ds_read_b64_tr_b16 {vr(R+2*x,2)}, v28 offset:{aa*2048 + x*512 + b*32}")
    C0 = 16
    for b in range(4): a(f"v_mov_b32 v{C0+b}, 0")
    a("s_waitcnt lgkmcnt(0)")
    for aa in range(2):
        for b in range(4):
            R = R0 + 4*(aa*4+b)
            a(f"buffer_store_dwordx4 {vr(R,4)}, v1, {WSS}, s{SB+b} offen {SC}")
            if aa == 0: a(f"s_add_u32 s{SB+b}, s{SB+b}, s{SB+4}")
            for e in range(4):
                a(f"v_dot2_f32_bf16 v{C0+b}, v{R+e}, s43, v{C0+b}")
    a("s_nop 2")
    for b in range(4): a(f"v_mov_b32 v{C0+4+b}, v{C0+b}")
    a("s_nop 1")
    for b in range(4): a(f"v_permlane32_swap_b32 v{C0+b}, v{C0+4+b}")
    a("s_nop 1")
    for b in range(4): a(f"v_add_f32 v{C0+b}, v{C0+b}, v{C0+4+b}")
    a("s_cmp_lt_u32 s3, 3\ns_cbranch_scc1 M_NOW3")
    lds_wait(3)
    a("M_NOW3:")
    for b in range(4): a(f"buffer_atomic_add_f32 v{C0+b}, v29, {WSS}, s{SB+5} offen offset:{128*b} sc1")
    a("s_waitcnt vmcnt(0)")
    mstamp(4)
    a("s_cmp_lt_u32 s3, 3\ns_cbranch_scc1 M_ARRW")
    lds_last(9, 5, "M_PKD")
    arrive(WSS, C2AW, 96, FLG + 12, 256)
    a("M_PKD:\ns_cmp_ge_u32 s3, 4\ns_cbranch_scc1 M_W4PRE\ns_branch M_P2\nM_ARRW:")
    lds_last(10, 3, "M_P2")
    lds_wait(1)
    a(f"s_lshr_b32 s38, s2, 5\ns_lshl_b32 s38, s38, 10\ns_add_u32 s38, s38, {G1B + 128}")
    arr_begin(WSS, "s38", 12, "M_P2")
    arr_begin(DBS, 192, 8, "M_P2")
    release(FLG1 + 8, 256)
    a("M_P2:\ns_barrier                  ; B_e")
    from mega34 import p34
    p34()
    a("M_END:")
    a.end(name, 256, 102)
    a("M_CODE_END:")
    a.launches.append(f"; @launch grid=(256,1,1) block=(512,1,1) lds={LDS_TOTAL}")
```

```python
from mega import *

FS_LDS = None
def p34():
    UREG = 12288 + 32
    FS = ST_LDS + 16384 - 1024 + 0
    FSL = SY_LDS + 64
    a(f"""
    M3_START:
    s_and_b32 s8, s2, 7                    ; xcd
    s_lshr_b32 s5, s2, 3                   ; j
    s_and_b32 s6, s8, 3
    s_lshl_b32 s6, s6, 2
    s_and_b32 s7, s5, 3
    s_add_u32 s6, s6, s7                   ; sb
    s_lshr_b32 s7, s8, 2
    s_lshl_b32 s7, s7, 3
    s_lshr_b32 s8, s5, 2
    s_add_u32 s7, s7, s8                   ; fb
    v_mov_b32 v2, v0
    v_lshlrev_b32 v4, 4, v2                ; lane*16
    v_lshrrev_b32 v5, 4, v2                ; G
    """)
    mstamp(7)
    a(f"""
    s_cmp_lt_u32 s3, 4
    s_cbranch_scc1 M3_CONS
    """)
    a(f"""
    s_sub_u32 s9, s3, 4                    ; p
    s_mul_i32 s33, s9, {16*3072}
    s_mul_i32 s8, s7, 192
    s_add_u32 s33, s33, s8
    s_mul_i32 s30, s9, 3072
    """)
    srd(16, P_WG, D*F*2); srd(24, P_WU, D*F*2)
    WO = 52
    for j in range(3):
        a(f"""
        v_add_u32 v13, {64*j}, v2
        v_mul_u32_u24 v14, 171, v13
        v_lshrrev_b32 v14, 11, v14
        v_mul_u32_u24 v15, 12, v14
        v_sub_u32 v13, v13, v15
        v_mul_u32_u24 v14, 3072, v14
        v_lshl_add_u32 v{WO+j}, v13, 4, v14
        """)
        if j: a(f"v_add_u32 v{WO+j}, {(-1024*j) & 0xffffffff}, v{WO+j}")
    def dmaW(sb):
        o = [f"s_add_u32 m0, s{sb}, s30", "s_nop 0"]
        for j in range(3):
            o.append(f"buffer_load_dwordx4 v{WO+j}, s[16:19], s33 offen offset:{1024*j} lds")
        o += [f"s_add_u32 m0, m0, {UREG}", "s_nop 0"]
        for j in range(3):
            o.append(f"buffer_load_dwordx4 v{WO+j}, s[24:27], s33 offen offset:{1024*j} lds")
        o.append(f"s_add_u32 s33, s33, {64*3072}")
        return o
    def dmaH(sb):
        o = [f"s_add_u32 m0, s{sb}, s32", f"s_add_u32 s35, s34, {4*HS-1024}",
             f"buffer_load_dwordx4 v6, s[20:23], s34 offen {SC} lds"]
        for i in range(1, 4):
            o.append(f"buffer_load_dwordx4 v6, s[20:23], s35 offen offset:{1024*i} {SC} lds")
            if i < 3: o.append(f"s_add_u32 s35, s35, {4*HS-1024}")
        o.append(f"s_add_u32 s34, s34, {64*HS}")
        return o
    for st in range(3):
        a(f"s_mov_b32 s36, {st*STG}")
        for l in dmaW(36): a(l)
    WS_SP = 0x500000
    WR = 86
    class VM:
        def __init__(s): s.q = []
        def issue(s, tag, n=1): s.q += [tag] * n
        def wait(s, tag):
            last = max(i for i, t in enumerate(s.q) if t == tag)
            n = len(s.q) - 1 - last
            s.q = s.q[last+1:]
            return f"s_waitcnt vmcnt({n})"
    vm = VM()
    for st in range(3): vm.issue(("W", st), 6)
    a(f"""
    s_lshl_b32 s8, s6, 8
    s_add_u32 s8, s8, {WS_HT}
    s_add_u32 s20, s{P_WS}, s8
    s_addc_u32 s21, s{P_WS+1}, 0
    s_mov_b32 s22, {639*HS+256}
    s_mov_b32 s23, 0x20000
    v_and_b32 v6, 15, v2
    v_lshlrev_b32 v7, 2, v5
    v_xor_b32 v6, v6, v7
    v_lshlrev_b32 v6, 4, v6
    v_mul_u32_u24 v7, {HS}, v5
    v_add_u32 v6, v7, v6
    s_mul_i32 s34, s9, {16*HS}
    s_lshl_b32 s32, s9, 12
    s_add_u32 s32, s32, {HOFF}
    s_lshl_b32 s4, s2, 7
    s_add_u32 s4, s4, {FLG + 12}
    v_mov_b32 v247, s4                     ; CS flag addr
    s_lshl_b32 s8, s9, 8
    v_lshl_add_u32 v3, v2, 2, s8           ; ptid*4
    v_add_u32 v10, {ST_LDS}, v3
    s_mul_i32 s10, s7, 768
    s_add_u32 s10, s10, {CSA}
    s_lshr_b32 s12, s7, 1
    s_mul_i32 s8, s12, {48*5120}
    s_add_u32 s8, s8, {WS_WP2}
    s_mul_i32 s12, s3, {6*5120}
    s_add_u32 s31, s8, s12
    s_mul_i32 s12, s9, 10240
    s_add_u32 s29, s8, s12
    s_lshl_b32 s12, s6, 10
    s_add_u32 s11, s12, {SPA}
    s_lshl_b32 s13, s6, 7
    s_add_u32 s13, s13, {C3 + 4}
    v_mov_b32 v245, s13
    v_mov_b32 v244, 1
    s_mul_i32 s14, s9, 10240
    v_add_u32 v246, -4, v247               ; S2w flag addr (word 2)
    s_mul_i32 s39, s7, 40
    s_mul_i32 s41, s9, 10
    s_add_u32 s39, s39, s41
    s_mul_i32 s39, s39, {HS}
    s_lshl_b32 s41, s6, 8
    s_add_u32 s39, s39, s41
    s_add_u32 s39, s39, {WS_HT}
    v_mul_u32_u24 v11, {HS}, v5
    v_and_b32 v12, 15, v2
    v_lshl_add_u32 v11, v12, 4, v11
    v_cmp_gt_u32 vcc, 2, v5
    v_mov_b32 v13, 0x40000000
    s_add_u32 s41, s39, {4*HS}
    s_add_u32 s42, s39, {8*HS}
    v_cndmask_b32 v13, v13, v11, vcc
    v_lshlrev_b32 v12, 5, v12
    v_lshl_add_u32 v12, v5, 10, v12
    s_lshl_b32 s8, s9, 12
    s_add_u32 s8, s8, {ST_LDS}
    v_add_u32 v12, s8, v12
    """)
    def wl(q, sreg=31):
        t = f"buffer_load_dwordx4 {vr(WR+4*q,4)}, v4, {WSS}, s{sreg} offen offset:{1024*(q&3)} {SC}"
        if q & 3 == 3: t += f"\ns_add_u32 s{sreg}, s{sreg}, 4096"
        return t
    a("s_barrier                 ; B_f (S2b released)")
    mstamp(8)
    for st in range(3):
        a(f"s_mov_b32 s36, {st*STG}")
        for l in dmaH(36): a(l)
        vm.issue(("H", st), 4)
    a(f"""
    buffer_load_dwordx4 v[32:35], v11, {WSS}, s39 offen {SC}
    buffer_load_dwordx4 v[36:39], v11, {WSS}, s41 offen {SC}
    buffer_load_dwordx4 v[40:43], v13, {WSS}, s42 offen {SC}
    """)
    vm.issue("slice", 3)
    a(vm.wait(("H", 0)))
    a("s_barrier                 ; B_g")
    mstamp(9)
    SUM, SQ, TMP = 16, 24, 48
    a(vm.wait("slice"))
    for i in range(3):
        for e in range(4):
            d = 32 + 4*i + e
            if i == 0:
                a(f"v_lshlrev_b32 v{SUM+2*e}, 16, v{d}\nv_and_b32 v{SUM+2*e+1}, s40, v{d}")
                a(f"v_mul_f32 v{SQ+2*e}, v{SUM+2*e}, v{SUM+2*e}\nv_mul_f32 v{SQ+2*e+1}, v{SUM+2*e+1}, v{SUM+2*e+1}")
            else:
                t = TMP + 2*(e & 1)
                a(f"v_lshlrev_b32 v{t}, 16, v{d}\nv_and_b32 v{t+1}, s40, v{d}")
                a(f"v_add_f32 v{SUM+2*e}, v{SUM+2*e}, v{t}\nv_add_f32 v{SUM+2*e+1}, v{SUM+2*e+1}, v{t+1}")
                a(f"v_fmac_f32 v{SQ+2*e}, v{t}, v{t}\nv_fmac_f32 v{SQ+2*e+1}, v{t+1}, v{t+1}")
    a(f"""
    ds_write_b128 v12, {vr(SUM,4)}
    ds_write_b128 v12, {vr(SUM+4,4)} offset:16
    ds_write_b128 v12, {vr(SQ,4)} offset:512
    ds_write_b128 v12, {vr(SQ+4,4)} offset:528
    s_waitcnt lgkmcnt(0)
    """)
    wq = 0
    for i in range(10):
        if i < 9:
            tag = ("H", i+1) if i + 1 < 3 else ("S", i+1)
            if tag in vm.q: a(vm.wait(tag))
        a(f"s_barrier                 ; loop {i}")
        if os.environ.get("LST") and i in (0, 2, 4, 6, 8, 9): mstamp({0:1, 2:2, 4:3, 6:4, 8:5, 9:6}[i])
        if i <= 6:
            a(f"s_mov_b32 s36, {(i % 3)*STG}")
            for l in dmaH(36) + dmaW(36): a(l)
            vm.issue(("S", i+3), 10)
        if i == 0:
            for sl in range(16): a(f"ds_read_b32 v{16+sl}, v10 offset:{1024*sl}")
        if i == 0:
            a("s_waitcnt lgkmcnt(0)")
            for st_ in (8, 4, 2, 1):
                for k_ in range(st_): a(f"v_add_f32 v{16+k_}, v{16+k_}, v{16+k_+st_}")
            a(f"buffer_atomic_add_f32 v16, v3, {WSS}, s11 offen sc1"); vm.issue("sp")
        if i == 3:
            assert "sp" not in vm.q
            a(f"""
            s_cmp_lg_u32 s3, 4
            s_cselect_b64 exec, 0, 1
            s_cbranch_scc1 M3P_NOAT
            buffer_atomic_add v244, v245, {WSS}, 0 offen sc1
            M3P_NOAT:
            s_mov_b64 exec, -1
            """)
        if i == 3:
            a(f"buffer_load_dword v252, v247, {WSS}, 0 offen sc1"); vm.issue("flag")
        if i == 5:
            if "flag" in vm.q: a(vm.wait("flag"))
            a("v_cmp_eq_u32 vcc, 0, v252\ns_cbranch_vccz M3P_FLAGOK")
            poll(WSS, 247, "1", 1)
            a("M3P_FLAGOK:")
            a(f"buffer_load_dword v60, v3, {WSS}, s10 offen {SC}"); vm.issue("cs")
        if i == 5:
            a(f"buffer_load_dword v251, v245, {WSS}, 0 offen sc1"); vm.issue("cnt")
        if i == 7:
            if "cnt" in vm.q: a(vm.wait("cnt"))
            a("v_cmp_gt_u32 vcc, 16, v251\ns_cbranch_vccz M3P_CNTOK")
            poll(WSS, 245, "1", 16)
            a("M3P_CNTOK:")
            a(f"buffer_load_dword v16, v3, {WSS}, s11 offen {SC}"); vm.issue("gp")
            a(f"v_add_u32 v11, {CS_LDS}, v3\nds_write_b32 v11, v60")
        if i == 8:
            a(vm.wait("gp"))
            a(f"v_mul_f32 v16, {hexf(1.0/640)}, v16\nv_add_u32 v11, {FSL}, v3\nds_write_b32 v11, v16\ns_waitcnt lgkmcnt(0)")
        if i >= 7:
            buf = (i % 3) * STG
            a(f"s_add_u32 m0, s14, {buf}\ns_add_u32 s15, s29, 4096\ns_add_u32 s28, s29, 8192")
            for q in range(10):
                if q in (4, 8): a("s_add_u32 m0, m0, 4096\ns_nop 0")
                a(f"buffer_load_dwordx4 v4, {WSS}, s{[29,15,28][q>>2]} offen offset:{1024*(q&3)} {SC} lds")
            a("s_add_u32 s29, s29, 40960")
            vm.issue(("L", i), 10)
    mstamp(10)
    a(f"""
    s_lshr_b32 s10, s7, 1                  ; db
    s_and_b32 s11, s7, 1
    s_lshl_b32 s8, s6, 1
    s_add_u32 s11, s11, s8                 ; sb64
    s_branch M4_START2
    """)
    a(f"""
    M3_CONS:
    s_and_b32 s37, s3, 1                   ; wm
    s_lshr_b32 s38, s3, 1                  ; wn
    v_bfe_u32 v9, v2, 2, 2                 ; r
    v_lshrrev_b32 v10, 5, v2               ; hi
    v_and_b32 v12, 1, v5                   ; mat / (G&1)
    v_and_b32 v13, 3, v2                   ; c
    v_mul_u32_u24 v7, {UREG}, v12
    v_lshl_add_u32 v8, v10, 3, v9          ; 8hi + r
    v_mul_u32_u24 v8, 192, v8
    v_add_u32 v7, v7, v8
    v_lshl_add_u32 v7, v13, 3, v7
    s_mul_i32 s39, s37, 96
    v_add_u32 v7, s39, v7                  ; A addr
    v_lshl_add_u32 v11, v10, 3, v9
    v_lshlrev_b32 v11, 8, v11
    v_lshl_add_u32 v11, v12, 5, v11
    v_lshl_add_u32 v11, v13, 3, v11
    v_add_u32 v11, {HOFF}, v11
    s_lshl_b32 s39, s38, 1
    v_xor_b32 v12, s39, v9
    v_xor_b32 v13, 1, v12
    v_lshl_add_u32 v9, v12, 6, v11         ; B0
    v_lshl_add_u32 v10, v13, 6, v11        ; B1
    s_and_b32 s39, s2, 15
    s_lshl_b32 s39, s39, 7
    s_add_u32 s39, s39, {R2B}
    v_lshl_add_u32 v14, v2, 2, s39
    s_cmp_lg_u32 s3, 0
    s_cbranch_scc1 M3_NOPOLL
    """)
    poll(WSS, 14, "0x3ff", 1)
    a("M3_NOPOLL:\ns_barrier                 ; B_f")
    mstamp(8)
    ACC = 16
    for i in range(96): a(f"v_mov_b32 v{ACC+i}, 0")
    FB = [116, 136]
    def reads(buf, ks):
        o = []
        F_ = FB[buf]
        def A(i):
            return [f"ds_read_b64_tr_b16 {vr(F_+4*i+2*x,2)}, v160 offset:{(16*ks+4*x)*192+i*32}" for x in range(2)]
        o += A(0)
        for j, vb in enumerate((162, 163)):
            for x in range(2):
                o.append(f"ds_read_b64_tr_b16 {vr(F_+12+4*j+2*x,2)}, v{vb} offset:{ks*4096 + x*1024}")
        o += A(1) + A(2)
        return o
    def mfmas(buf):
        F_ = FB[buf]
        o = []
        for i in range(3):
            for j in range(2):
                c = ACC + 16*(2*i+j)
                o.append(f"v_mfma_f32_32x32x16_bf16 {vr(c,16)}, {vr(F_+4*i,4)}, {vr(F_+12+4*j,4)}, {vr(c,16)}")
        return o
    def interleave(ms, fillers, per=2):
        for m in ms:
            a(m)
            for _ in range(per):
                if fillers: a(fillers.pop(0))
        assert not fillers
    a(f"""
    v_mov_b32 v160, v7
    v_mov_b32 v162, v9
    v_mov_b32 v163, v10
    s_mov_b32 s41, {STG}
    s_mov_b32 s42, 0
    s_setprio 1
    s_waitcnt lgkmcnt(0)
    s_barrier                 ; B_g
    """)
    mstamp(9)
    for l in reads(0, 0): a(l)
    a("M3_LOOP:")
    for ks in range(3):
        a("s_waitcnt lgkmcnt(0)")
        interleave(mfmas(ks & 1), reads((ks+1) & 1, ks+1))
    a(f"""
    v_add_u32 v160, s41, v7
    v_add_u32 v162, s41, v9
    v_add_u32 v163, s41, v10
    s_waitcnt lgkmcnt(0)
    s_barrier
    """)
    rot = [f"s_add_u32 s41, s41, {STG}", f"s_cmp_eq_u32 s41, {3*STG}", f"s_cselect_b32 s41, 0, s41", "s_add_u32 s42, s42, 1", "s_cmp_lt_u32 s42, 10"]
    interleave(mfmas(1), reads(0, 0) + rot, per=3)
    a("s_cbranch_scc1 M3_LOOP")
    CSR = 116
    a(f"""
    s_setprio 0
    v_lshrrev_b32 v10, 5, v2
    v_lshlrev_b32 v11, 4, v10
    s_mul_i32 s39, s37, 384
    s_add_u32 s39, s39, {CS_LDS}
    v_add_u32 v11, s39, v11
    v_and_b32 v13, 31, v2
    s_lshl_b32 s39, s38, 8
    s_add_u32 s39, s39, {FSL}
    v_lshl_add_u32 v13, v13, 2, s39
    v_and_b32 v12, 1, v5
    v_mul_u32_u24 v12, 49152, v12
    v_lshl_add_u32 v12, v10, 8, v12
    v_and_b32 v14, 15, v2
    v_lshl_add_u32 v12, v14, 4, v12
    s_lshl_b32 s43, s6, 3
    s_lshl_b32 s46, s38, 2
    s_add_u32 s43, s43, s46
    s_mul_i32 s43, s43, 49152
    s_mul_i32 s46, s7, 6
    s_mul_i32 s48, s37, 3
    s_add_u32 s46, s46, s48
    s_lshl_b32 s46, s46, 9
    s_add_u32 s43, s43, s46
    s_add_u32 s43, s43, {WS_HH}
    s_add_u32 s46, s43, {2*49152}
    s_mov_b32 s45, {hexf(1e-5)}
    s_waitcnt lgkmcnt(0)
    """)
    mstamp(10)
    P = 164
    a(f"ds_read2_b32 {vr(P,2)}, v13 offset0:0 offset1:32\nds_read2_b32 {vr(P+2,2)}, v13 offset0:128 offset1:160")
    for i in range(3):
        for q in range(4):
            a(f"ds_read_b128 {vr(CSR+16*i+4*q,4)}, v11 offset:{i*128+q*32}")
    a("s_waitcnt lgkmcnt(12)")
    NM, R2 = P+8, P+12
    for j in range(2):
        sm, sq = P+j, P+2+j
        a(f"""
        v_fma_f32 v{sq}, -v{sm}, v{sm}, v{sq}
        v_max_f32 v{sq}, 0, v{sq}
        v_add_f32 v{sq}, s45, v{sq}
        v_rcp_f32 v{R2+2*j}, v{sq}
        v_sub_f32 v{NM+2*j}, 0, v{sm}
        v_sub_f32 v{NM+2*j+1}, 0, v{sm}
        v_mov_b32 v{R2+2*j+1}, v{R2+2*j}
        """)
    HO = 206
    for i in range(3):
        a(f"s_waitcnt lgkmcnt({4*(2-i)})")
        for j in range(2):
            c = ACC + 16*(2*i+j)
            o = HO + 4*(2*i+j)
            for e in range(0, 16, 2):
                a(f"v_pk_fma_f32 {vr(c+e,2)}, {vr(NM+2*j,2)}, {vr(CSR+16*i+e,2)}, {vr(c+e,2)}")
            for e in range(0, 8, 2):
                a(f"v_max_f32 v{c+e}, 0, v{c+e}")
                a(f"v_max_f32 v{c+e+1}, 0, v{c+e+1}")
                a(f"v_pk_mul_f32 {vr(c+8+e,2)}, {vr(R2+2*j,2)}, {vr(c+8+e,2)}")
            for e in range(0, 8, 2):
                a(f"v_pk_mul_f32 {vr(c+e,2)}, {vr(c+e,2)}, {vr(c+8+e,2)}")
            for e in range(4):
                a(f"v_cvt_pk_bf16_f32 v{o+e}, v{c+2*e}, v{c+2*e+1}")
            a(f"buffer_store_dwordx4 {vr(o,4)}, v12, {WSS}, s{43 if j==0 else 46} offen offset:{512*i} {SC}")
    ACC4, WR, HB = 6, 86, 206
    a(f"""
    M4_START:
    s_lshr_b32 s10, s7, 1                  ; db
    s_and_b32 s11, s7, 1
    s_lshl_b32 s8, s6, 1
    s_add_u32 s11, s11, s8                 ; sb64
    """)
    for t in range(3):
        a(f"""
        s_mul_i32 s8, s3, 3
        s_add_u32 s8, s8, {t}
        s_lshr_b32 s12, s8, 2                  ; batch
        s_and_b32 s8, s8, 3
        s_mul_i32 s8, s8, 10240
        s_add_u32 s12, s12, 1
        s_cmp_eq_u32 s12, 3
        s_cselect_b32 s12, 0, s12
        s_mul_i32 s12, s12, {STG}
        s_add_u32 s8, s8, s12
        v_add_u32 v{240+t}, s8, v4
        """)
    a("s_waitcnt vmcnt(0)")
    mstamp(11)
    a("s_barrier                 ; B_h (consumers)")
    for q in range(30):
        a(f"ds_read_b128 {vr(WR+4*q,4)}, v{240+q//10} offset:{1024*(q%10)}")
    a("M4_START2:")
    a(f"""
    v_lshrrev_b32 v5, 3, v2
    v_and_b32 v3, 7, v2
    v_mul_u32_u24 v5, {HS}, v5
    v_lshl_add_u32 v5, v3, 4, v5
    s_mul_i32 s8, s10, {80*HS}
    s_lshl_b32 s12, s11, 7
    s_add_u32 s8, s8, s12
    s_mul_i32 s12, s3, {16*HS}
    s_add_u32 s8, s8, s12
    s_add_u32 s8, s8, {WS_HT}
    s_min_u32 s13, s3, 5
    s_lshl_b32 s12, s13, 11
    s_add_u32 m0, s12, {HT_LDS}
    s_cmp_lt_u32 s3, 5
    s_cselect_b32 s8, s8, 0x40000000
    s_add_u32 s12, s8, {8*HS-1024}
    buffer_load_dwordx4 v5, {WSS}, s8 offen {SC} lds
    buffer_load_dwordx4 v5, {WSS}, s12 offen offset:1024 {SC} lds
    s_mul_i32 s8, s11, {4*49152}
    s_mul_i32 s12, s3, {6*1024}
    s_add_u32 s8, s8, s12
    s_add_u32 s31, s8, {WS_HH}
    s_add_u32 s32, s31, {49152}
    s_add_u32 s33, s31, {2*49152}
    s_add_u32 s34, s31, {3*49152}
    s_lshl_b32 s36, s6, 7
    s_add_u32 s35, s36, {R3}
    s_add_u32 s36, s36, {C3}
    v_mov_b32 v3, s35
    """)
    srd(20, P_OUT, NB_SD)
    a(f"""
    s_cmp_lt_u32 s3, 4
    s_cbranch_scc1 M4_NOPOLL
    s_waitcnt vmcnt(2)
    s_barrier                 ; B_h (producers)
    s_cmp_lg_u32 s3, 4
    s_cbranch_scc1 M4_NOPOLL
    """)
    arrive(WSS, "s36", 16, "s35")
    poll(WSS, 3, "1", 1)
    a("M4_NOPOLL:\ns_waitcnt lgkmcnt(0)\ns_barrier                 ; B_i")
    mstamp(12)
    def loadsH(sl):
        b = HB + 16*(sl % 3)
        o = []
        for st in range(4):
            if sl < 4: o.append(f"buffer_load_dwordx4 {vr(b+4*st,4)}, v4, {WSS}, s{31+st} offen offset:{1024*sl} {SC}")
            else: o.append(f"buffer_load_dwordx4 {vr(b+4*st,4)}, v1, {WSS}, s{31+st} offen offset:{1024*(sl-4)} {SC}")
        return o
    a("v_add_u32 v1, 4096, v4")
    for sl in range(3):
        for l in loadsH(sl): a(l)
    for sl in range(6):
        a(f"s_waitcnt vmcnt({4*min(2, 5-sl)})")
        b = HB + 16*(sl % 3)
        for dt in range(5):
            for st in range(4):
                c = ACC4 + 4*(dt*4+st)
                src = "0" if sl == 0 else vr(c,4)
                a(f"v_mfma_f32_16x16x32_bf16 {vr(c,4)}, {vr(WR+20*sl+4*dt,4)}, {vr(b+4*st,4)}, {src}")
        if sl + 3 < 6:
            for l in loadsH(sl + 3): a(l)
    if not os.environ.get('FST'): mstamp(13)
    a(f"""
    s_mul_i32 s8, s3, 10240
    v_lshlrev_b32 v5, 3, v2
    v_add_u32 v3, s8, v5
    s_nop 4
    """)
    for t in range(20):
        c = ACC4 + 4*t; o = WR + 2*t
        a(f"v_cvt_pk_bf16_f32 v{o}, v{c}, v{c+1}\nv_cvt_pk_bf16_f32 v{o+1}, v{c+2}, v{c+3}")
        a(f"ds_write_b64 v3, {vr(o,2)} offset:{512*t}")
    a(f"""
    s_lshl_b32 s8, s3, 9
    v_add_u32 v5, s8, v5                   ; + w*512
    v_add_u32 v1, 40960, v5
    v_lshrrev_b32 v6, 4, v2
    v_bfe_u32 v7, v2, 2, 2
    v_lshl_add_u32 v6, v6, 2, v7
    v_lshlrev_b32 v6, 7, v6
    v_and_b32 v7, 3, v2
    v_lshl_add_u32 v6, v7, 3, v6
    s_and_b32 s12, s3, 3                   ; st
    s_lshr_b32 s13, s3, 2                  ; dt0
    s_lshl_b32 s8, s12, 5
    s_lshl_b32 s14, s13, 11
    s_add_u32 s8, s8, s14
    s_add_u32 s8, s8, {HT_LDS}
    v_add_u32 v6, s8, v6
    v_and_b32 v7, 15, v2
    v_mul_u32_u24 v7, 1280, v7
    v_lshrrev_b32 v8, 4, v2
    v_lshl_add_u32 v7, v8, 3, v7
    s_lshl_b32 s8, s11, 6
    s_lshl_b32 s14, s12, 4
    s_add_u32 s8, s8, s14
    s_mul_i32 s8, s8, 1280
    s_mul_i32 s14, s10, 160
    s_add_u32 s8, s8, s14
    s_lshl_b32 s14, s13, 5
    s_add_u32 s8, s8, s14
    s_cmp_lt_u32 s3, 4
    s_cselect_b32 s15, s8, 0x40000000
    s_waitcnt vmcnt(0) lgkmcnt(0)
    s_barrier
    """)
    R = 130
    for i in range(3):
        for w in range(8):
            base = "v5" if w < 4 else "v1"
            a(f"ds_read_b64 {vr(R+2*(i*8+w),2)}, {base} offset:{(w&3)*10240 + i*4096}")
        a(f"ds_read_b64_tr_b16 {vr(R+48+2*i,2)}, v6 offset:{i*4096}")
    for i in range(3):
        a(f"s_waitcnt lgkmcnt({min(15, 9*(2-i))})")
        T = 10 + 16*i
        h0, h1 = R+48+2*i, R+49+2*i
        a(f"""
        v_lshlrev_b32 v{T}, 16, v{h0}
        v_and_b32 v{T+1}, s40, v{h0}
        v_lshlrev_b32 v{T+2}, 16, v{h1}
        v_and_b32 v{T+3}, s40, v{h1}
        """)
        for w in range(8):
            p0, p1 = R+2*(i*8+w), R+2*(i*8+w)+1
            U = T + 4 + 4*(w & 1)
            a(f"""
            v_lshlrev_b32 v{U}, 16, v{p0}
            v_and_b32 v{U+1}, s40, v{p0}
            v_lshlrev_b32 v{U+2}, 16, v{p1}
            v_and_b32 v{U+3}, s40, v{p1}
            v_pk_add_f32 {vr(T,2)}, {vr(T,2)}, {vr(U,2)}
            v_pk_add_f32 {vr(T+2,2)}, {vr(T+2,2)}, {vr(U+2,2)}
            """)
        a(f"""
        v_cvt_pk_bf16_f32 v{T+12}, v{T}, v{T+1}
        v_cvt_pk_bf16_f32 v{T+13}, v{T+2}, v{T+3}
        buffer_store_dwordx2 {vr(T+12,2)}, v7, s[20:23], {'s8' if i < 2 else 's15'} offen offset:{64*i}
        """)
    if not os.environ.get('FST'): mstamp(14)
    mflush()
```

```python
from gen_common import *
KNAME = "sequential_preLN__ssm_conv_h3__glu_gated_reglu__prompt_kernel"

WS_CNT = 0x7E0000
P_X, P_K, P_V, P_SK, P_F, P_D, P_WG, P_WU, P_WD, P_OUT, P_DBG, P_WS = 64, 66, 68, 70, 72, 74, 78, 80, 82, 84, 86, 88
WSR, DBR = 92, 96
WSS = f"s[{WSR}:{WSR+3}]"; DBS = f"s[{DBR}:{DBR+3}]"
SC = os.environ.get("SCD", "sc1")
SCS = "sc1"
C1B, C2A = 80, 96
C2B = WS_CNT; R2B = WS_CNT + 10*128; C3 = WS_CNT + 26*128; R3 = WS_CNT + 42*128
NCONV = 160
CSA = WS_CNT + 12288
SPA = WS_CNT + 24576
FLG = WS_CNT + 40960
FLG1 = WS_CNT + 0x14000
S1C = WS_CNT + 64*128
G1B = WS_CNT + 0x1C000
C1BW = WS_CNT + 80*128
C2AW = WS_CNT + 81*128
RID = 90
FC_STRIDE = 4160
U0_OFF = 4 * FC_STRIDE
U1_OFF = U0_OFF + 4640
IMG = 26112
ST_LDS2 = 4 * IMG
XT_LDS = ST_LDS2 + 16384
STG = 41216
HOFF = 24832
CS_LDS = 3 * STG
ST_LDS = CS_LDS + 1024
HT_LDS = ST_LDS + 16384
SY_LDS = HT_LDS + 12288
LDS_TOTAL = SY_LDS + 64 + 1024

_ts = [0]
def mstamp(slot):
    if not TIMING: return
    a(f"s_memrealtime s[100:101]\ns_waitcnt lgkmcnt(0)\nv_writelane_b32 v255, s100, {slot}")
def mflush():
    if not TIMING: return
    a(f"""
    s_waitcnt vmcnt(0)
    s_memrealtime s[100:101]
    s_waitcnt lgkmcnt(0)
    v_writelane_b32 v255, s100, 15
    s_lshl_b32 s100, s2, 3
    s_add_u32 s100, s100, s3
    s_lshl_b32 s100, s100, 6
    s_add_u32 s100, s100, {WS_TS}
    v_mbcnt_lo_u32_b32 v254, -1, 0
    v_mbcnt_hi_u32_b32 v254, -1, v254
    v_lshlrev_b32 v254, 2, v254
    s_mov_b64 exec, 0xffff
    buffer_store_dword v255, v254, {WSS}, s100 offen
    s_mov_b64 exec, -1
    """)

def arr_begin(srd_, cnt_off, n, L, vt=248):
    a(f"""
    v_mov_b32 v{vt}, {cnt_off}
    v_mov_b32 v{vt+1}, 1
    s_mov_b64 exec, 1
    buffer_atomic_add v{vt+1}, v{vt}, {srd_}, 0 offen sc0 sc1
    s_waitcnt vmcnt(0)
    v_readfirstlane_b32 s4, v{vt+1}
    s_mov_b64 exec, -1
    {f"s_and_b32 s4, s4, {n-1}" if (n & (n-1)) == 0 else "s_nop 0"}
    s_cmp_lg_u32 s4, {n-1}
    s_cbranch_scc1 {L}
    """)
def release(rel_off, nrel, vt=248):
    a(f"""
    v_mov_b32 v{vt+3}, 1
    v_lshlrev_b32 v{vt+2}, 7, v0
    v_add_u32 v{vt+2}, {rel_off}, v{vt+2}
    """)
    if nrel < 64: a(f"s_mov_b64 exec, {hex((1 << nrel) - 1) if nrel < 32 else '0x7fffffff'}")
    if nrel == 32: a("s_bitset1_b64 exec, 31")
    for i in range(max(1, nrel // 64)):
        if i: a(f"v_add_u32 v{vt+2}, 8192, v{vt+2}")
        a(f"buffer_store_dword v{vt+3}, v{vt+2}, {WSS}, 0 offen sc1")
    a("s_mov_b64 exec, -1")
def release8(off, vt=248):
    a(f"""
    v_mov_b32 v{vt+3}, 1
    v_lshlrev_b32 v{vt+2}, 10, v0
    v_add_u32 v{vt+2}, {G1B + off}, v{vt+2}
    s_mov_b64 exec, 0xff
    buffer_store_dword v{vt+3}, v{vt+2}, {WSS}, 0 offen sc1
    s_mov_b64 exec, -1
    """)
def pollgrp(off, sleep=1):
    a(f"s_lshr_b32 s4, s2, 5\ns_lshl_b32 s4, s4, 10\ns_add_u32 s4, s4, {G1B + off}\nv_mov_b32 v247, s4")
    poll(WSS, 247, "1", 1, sleep)
def arrive(srd_, cnt_off, n, rel_off, nrel=1, vt=248):
    L = a.label("ARR")
    arr_begin(srd_, cnt_off, n, L, vt)
    release(rel_off, nrel, vt)
    a(f"{L}:")
def lds_last(word, n, Lnot, vt=246):
    a(f"""
    v_mov_b32 v{vt}, {SY_LDS + 4*word}
    v_mov_b32 v{vt+1}, 1
    s_mov_b64 exec, 1
    ds_add_rtn_u32 v{vt+1}, v{vt}, v{vt+1}
    s_waitcnt lgkmcnt(0)
    v_readfirstlane_b32 s4, v{vt+1}
    s_mov_b64 exec, -1
    s_cmp_lg_u32 s4, {n-1}
    s_cbranch_scc1 {Lnot}
    """)
def lds_add(word, vt=246):
    a(f"""
    v_mov_b32 v{vt}, {SY_LDS + 4*word}
    v_mov_b32 v{vt+1}, 1
    s_mov_b64 exec, 1
    ds_add_u32 v{vt}, v{vt+1}
    s_mov_b64 exec, -1
    """)
def lds_set(word, vt=246):
    a(f"""
    v_mov_b32 v{vt}, {SY_LDS + 4*word}
    v_mov_b32 v{vt+1}, 1
    ds_write_b32 v{vt}, v{vt+1}
    """)
def lds_wait(word, vt=246, n=1):
    L = a.label("LW")
    a(f"""
    v_mov_b32 v{vt}, {SY_LDS + 4*word}
    s_mov_b32 s4, 0
    {L}:
    ds_read_b32 v{vt+1}, v{vt}
    s_add_u32 s4, s4, 1
    s_waitcnt lgkmcnt(0)
    v_cmp_gt_u32 vcc, {n}, v{vt+1}
    s_cmp_gt_u32 s4, 0x400000
    s_cbranch_scc1 {L}_x
    s_cbranch_vccnz {L}
    {L}_x:
    """)
def pollflag(word, sleep=0):
    a(f"s_lshl_b32 s4, s2, 7\ns_add_u32 s4, s4, {FLG + 4*word}\nv_mov_b32 v247, s4")
    poll(WSS, 247, "1", 1, sleep)
def pollrep(word):
    a(f"s_and_b32 s4, s2, 15\ns_lshl_b32 s4, s4, 7\ns_add_u32 s4, s4, {R2B + 4*word}\nv_mov_b32 v247, s4")
    poll(WSS, 247, "1", 1, 1)
def arrive_s1():
    a(f"""
    s_lshr_b32 s38, s2, 5
    s_lshl_b32 s39, s38, 12
    s_add_u32 s39, s39, {FLG1}
    s_and_b32 s4, s38, 3
    s_lshl_b32 s4, s4, 4
    s_lshr_b32 s38, s38, 2
    s_lshl_b32 s38, s38, 7
    s_add_u32 s38, s38, s4
    """)
    L = a.label("ARR")
    arr_begin(DBS, "s38", 32, L)
    release("s39", 32)
    lds_set(13)
    a(f"s_branch {L}_d\n{L}:")
    a(f"s_lshl_b32 s4, s2, 7\ns_add_u32 s4, s4, {FLG1}\nv_mov_b32 v247, s4")
    poll(WSS, 247, "1", 1)
    a(f"{L}_d:")
def arrive_s1b():
    L = a.label("ARR")
    a(f"s_lshr_b32 s38, s2, 5\ns_lshl_b32 s38, s38, 10\ns_add_u32 s38, s38, {G1B}")
    arr_begin(WSS, "s38", 32, L)
    arr_begin(DBS, 64, 8, L)
    release8(256)
    a(f"{L}:")
def poll(srd_, vaddr, execmask, target, sleep=0, vt=252):
    L = a.label("POLL")
    a(f"""
    s_mov_b64 exec, {execmask}
    s_mov_b32 s4, 0
    {L}:
    buffer_load_dword v{vt}, v{vaddr}, {srd_}, 0 offen {SCS}
    s_add_u32 s4, s4, 1
    s_waitcnt vmcnt(0)
    v_cmp_gt_u32 vcc, {target}, v{vt}
    s_cmp_gt_u32 s4, 0x40000
    s_cbranch_scc1 {L}_x
    """)
    if sleep: a(f"s_sleep {sleep}")
    a(f"""
    s_cbranch_vccnz {L}
    {L}_x:
    s_mov_b64 exec, -1
    """)
def sdiv(dst, src, n):
    a(f"s_mul_i32 s{dst}, s{src}, {(65536 + n - 1) // n}\ns_lshr_b32 s{dst}, s{dst}, 16")
def sel(d, t, e):
    lit = lambda x: isinstance(x, int) and not (-16 <= x <= 64)
    if lit(t) and lit(e): return f"s_mov_b32 s{d}, {e}\ns_cmov_b32 s{d}, {t}"
    return f"s_cselect_b32 s{d}, {t}, {e}"


TRS = 144
def tile_lane_setup(tsg):
    a(f"""
    v_and_b32 v6, 3, v0
    v_lshrrev_b32 v7, 2, v0                ; rg
    s_and_b32 s38, s2, 31
    s_lshl_b32 s38, s38, 6                 ; row0
    s_lshr_b32 s39, s2, 5
    s_mul_i32 s39, s39, 80
    s_lshl_b32 s27, s{tsg}, 5
    s_add_u32 s39, s39, s27                ; cbase
    s_mul_i32 s26, s3, {32*TRS}
    s_add_u32 s26, s26, {ST_LDS2}
    s_cmp_ge_u32 s3, 4
    s_cselect_b32 s27, {32*TRS}, 0
    s_sub_u32 s26, s26, s27
    v_mul_u32_u24 v5, {8*TRS}, v6
    v_add_u32 v5, s26, v5
    v_lshl_add_u32 v4, v7, 2, s38          ; s0
    v_mul_u32_u24 v1, 1280, v4
    v_lshl_add_u32 v188, s{tsg}, 2, v6
    v_cmp_gt_u32 vcc, 10, v188
    v_lshl_add_u32 v6, v6, 3, s39          ; c0
    v_lshl_add_u32 v1, v6, 1, v1
    v_mov_b32 v4, 0x80000000
    v_cndmask_b32 v1, v4, v1, vcc
    v_lshrrev_b32 v4, 3, v0
    v_mul_u32_u24 v189, {TRS}, v4
    v_add_u32 v4, s39, v4
    v_lshlrev_b32 v4, 12, v4
    v_and_b32 v188, 7, v0
    v_lshl_add_u32 v4, v188, 4, v4
    v_lshl_add_u32 v189, v188, 4, v189
    v_add_u32 v189, s26, v189
    """)
def tile_store(region, rowoff_sgpr, R):
    a("s_waitcnt lgkmcnt(0)")
    for i in range(4): a(f"ds_read_b128 {vr(R+4*i,4)}, v189 offset:{8*TRS*i}")
    for i in range(4):
        a(f"""
        s_lshl_b32 s41, s5, 2
        s_add_u32 s41, s41, {i}
        s_cmp_lt_u32 s41, 10
        s_cselect_b32 s41, s{rowoff_sgpr}, 0x40000000
        s_add_u32 s41, s41, {region + i*32768}
        s_waitcnt lgkmcnt({3-i})
        buffer_store_dwordx4 {vr(R+4*i,4)}, v4, {WSS}, s41 offen {SC}
        """)

def mega():
    name = KNAME
    a.begin(name)
    a(f"""
    s_cmp_ge_u32 s2, 256
    s_cbranch_scc1 M_END
    s_load_dwordx16 s[64:79], s[0:1], 0
    s_load_dwordx8 s[80:87], s[0:1], 64
    s_load_dwordx2 s[88:89], s[0:1], 96
    v_lshrrev_b32 v1, 6, v0
    v_and_b32 v0, 63, v0
    v_readfirstlane_b32 s3, v1
    s_mov_b32 s40, 0xffff0000
    s_mov_b32 s43, 0x3f803f80
    s_mov_b32 s{WSR+2}, {WS_TS + 0x40000 if TIMING else WS_END}
    s_mov_b32 s{WSR+3}, 0x20000
    s_mov_b32 s{DBR+2}, 256
    s_mov_b32 s{DBR+3}, 0x20000
    s_and_b32 s5, s3, 3
    s_lshr_b32 s6, s2, 5                   ; g
    s_and_b32 s7, s6, 1
    s_lshl_b32 s7, s7, 2
    s_add_u32 s7, s7, s2
    s_and_b32 s7, s7, 31                   ; r
    s_mul_i32 s8, s6, 20
    s_add_u32 s8, s8, s7
    s_mul_i32 s9, s6, 12
    s_add_u32 s9, s9, s7
    s_add_u32 s9, s9, 140
    s_cmp_lt_u32 s7, 20
    s_cselect_b32 s{RID}, s8, s9
    """)
    if TIMING: a("v_mov_b32 v255, 0")
    mstamp(0)
    tile_lane_setup(5)
    a(f"""
    s_cmp_ge_u32 s3, 4
    s_cbranch_scc1 M_UPPER
    """)
    a(f"""
    v_add_u32 v2, -3840, v1
    v_lshlrev_b32 v3, 3, v6
    s_lshl_b32 s28, s{RID}, 2
    s_add_u32 s28, s28, s3
    s_cmp_lt_u32 s{RID}, {NCONV}
    s_cselect_b32 s28, s28, 0
    s_cselect_b32 s18, 4096, 0
    s_lshl_b32 s29, s28, 12
    v_lshlrev_b32 v190, 4, v0
    v_add_u32 v191, -8, v190
    v_add_u32 v192, 1016, v190
    s_waitcnt lgkmcnt(0)
    """)
    srd(20, P_K, NB_SD); srd(24, P_V, NB_SD); srd(32, P_SK, D*8)
    for i in range(3):
        a(f"buffer_load_dwordx4 {vr(8+4*i,4)}, v2, s[20:23], 0 offen offset:{i*1280}")
    for i in range(4):
        a(f"buffer_load_dwordx4 {vr(20+4*i,4)}, v1, s[20:23], 0 offen offset:{i*1280}")
    for i in range(4):
        a(f"buffer_load_dwordx4 {vr(36+4*i,4)}, v1, s[24:27], 0 offen offset:{i*1280}")
    for i in range(4):
        a(f"buffer_load_dwordx4 {vr(68+4*i,4)}, v3, s[32:35], 0 offen offset:{i*16}")
    a(f"""
    s_add_u32 s16, s{P_F}, s29
    s_addc_u32 s17, s{P_F+1}, 0
    s_mov_b32 s19, 0x20000
    s_mov_b32 s{WSR}, s{P_WS}
    s_mov_b32 s{WSR+1}, s{P_WS+1}
    s_mov_b32 s{DBR}, s{P_DBG}
    s_mov_b32 s{DBR+1}, s{P_DBG+1}
    s_lshl_b32 s8, s2, 7
    s_add_u32 s8, s8, {FLG1}
    s_lshl_b32 s9, s6, 7
    s_add_u32 s9, s9, {G1B}
    s_and_b32 s10, s2, 31
    s_cmp_eq_u32 s10, 0
    s_mov_b32 s9, 0x40000000
    v_mov_b32 v198, s8
    v_mov_b32 v199, s9
    v_cmp_eq_u32 vcc, 0, v0
    v_mov_b32 v194, 0
    v_mov_b32 v195, 0
    v_mov_b32 v196, 0
    v_mov_b32 v197, 0
    v_cndmask_b32 v198, v199, v198, vcc
    s_cmp_eq_u32 s3, 3
    s_cselect_b32 s10, 0, 0x40000000
    s_mov_b64 exec, 3
    buffer_store_dwordx4 v[194:197], v198, {WSS}, s10 offen sc1
    s_mov_b64 exec, -1
    """)
    E = 200
    FD = True
    def floads():
        for i in range(4):
            a(f"buffer_load_dwordx4 {vr(E+6*i+2,4)}, v190, s[16:19], 0 offen offset:{1024*i}")
            if i == 0: a(f"buffer_load_dwordx2 {vr(E,2)}, v191, s[16:19], 0 offen")
            else: a(f"buffer_load_dwordx2 {vr(E+6*i,2)}, v192, s[16:19], 0 offen offset:{1024*(i-1)}")
    if not FD: floads()
    a(f"""
    v_sub_u32 v7, 15, v7
    v_lshl_add_u32 v5, v7, 3, v5
    s_sub_u32 s31, 1984, s38
    s_lshl_b32 s31, s31, 1
    s_and_b32 s36, s28, 0xfffffffe
    s_lshl_b32 s36, s36, 1
    s_load_dword s37, s[{P_D}:{P_D+1}], s36
    s_mul_i32 s30, s3, {IMG}
    v_add_u32 v193, s30, v190
    v_mov_b32 v194, 0
    v_mov_b32 v195, 0
    v_mov_b32 v196, 0
    v_mov_b32 v197, 0
    s_mov_b64 exec, 7
    """)
    for c in range(4): a(f"ds_write_b128 v193, v[194:197] offset:{c*FC_STRIDE}")
    a("s_mov_b64 exec, 0xfffffff")
    a(f"ds_write_b128 v193, v[194:197] offset:{U0_OFF+4096}")
    a(f"ds_write_b128 v193, v[194:197] offset:{U1_OFF+4096}")
    a("s_mov_b64 exec, -1")
    a(f"""
    v_mov_b32 v198, {SY_LDS}
    ds_write_b128 v198, v[194:197]
    ds_write_b128 v198, v[194:197] offset:16
    ds_write_b128 v198, v[194:197] offset:32
    ds_write_b128 v198, v[194:197] offset:48
    s_waitcnt lgkmcnt(0)
    s_barrier                 ; B_init
    s_waitcnt vmcnt({0 if FD else 8})
    """)
    mstamp(1)
    lds_add(5)
    a("s_cmp_eq_u32 s3, 3\ns_cbranch_scc1 M_SKIPKV")
    Q = 144
    def xreg(e):
        return Q + 4*(e & 3) + (2 if e < 4 else 0)
    for jj, j in enumerate((0, 2, 1, 3)):
        wa0, wa1, wb0, wb1 = 68+4*j, 68+4*j+1, 68+4*j+2, 68+4*j+3
        a(f"""
        v_lshlrev_b32 v106, 16, v{wa0}
        v_lshlrev_b32 v107, 16, v{wb0}
        v_and_b32 v108, s40, v{wa0}
        v_and_b32 v109, s40, v{wb0}
        v_lshlrev_b32 v110, 16, v{wa1}
        v_lshlrev_b32 v111, 16, v{wb1}
        v_and_b32 v112, s40, v{wa1}
        v_and_b32 v113, s40, v{wb1}
        """)
        for i in range(7):
            a(f"v_lshlrev_b32 v{84+2*i}, 16, v{8+4*i+j}")
            a(f"v_and_b32 v{85+2*i}, s40, v{8+4*i+j}")
        for i in range(4):
            a(f"v_lshlrev_b32 v{98+2*i}, 16, v{36+4*i+j}")
            a(f"v_and_b32 v{99+2*i}, s40, v{36+4*i+j}")
        for rho in range(4):
            acc = 114 + 2*rho
            a(f"v_pk_mul_f32 {vr(acc,2)}, {vr(84+2*(rho+3),2)}, {vr(106,2)}")
            for t in range(1, 4):
                a(f"v_pk_fma_f32 {vr(acc,2)}, {vr(84+2*(rho+3-t),2)}, {vr(106+2*t,2)}, {vr(acc,2)}")
        for rho in range(4):
            acc = 114 + 2*rho
            a(f"v_pk_mul_f32 {vr(acc,2)}, {vr(acc,2)}, {vr(98+2*rho,2)}")
        for h in range(2):
            o = Q + 2*(2*j + h)
            a(f"v_cvt_pk_bf16_f32 v{o}, v{114+6+h}, v{114+4+h}")
            a(f"v_cvt_pk_bf16_f32 v{o+1}, v{114+2+h}, v{114+0+h}")
            a(f"ds_write_b64 v5, {vr(o,2)} offset:{TRS*(2*j+h)}")
    tile_store(WS_UR, 31, 160)
    floads()
    a("s_waitcnt vmcnt(8)")
    mstamp(2)
    lds_add(0)
    a("s_branch M_KVDONE\nM_SKIPKV:")
    floads()
    a(f"""
    M_KVDONE:
    s_cmp_ge_u32 s{RID}, {NCONV}
    s_cbranch_scc1 M_LOWNC
    """)
    T = 80
    for i in range(4):
        e = E + 6*i; t = T + 12*(i & 1)
        a(f"s_waitcnt vmcnt({8 - 2*(i+1)})")
        a(f"ds_write_b128 v193, {vr(e+2,4)} offset:{3*FC_STRIDE+48+1024*i}")
        for j in range(4): a(f"v_alignbit_b32 v{t+j}, v{e+j+1}, v{e+j}, 16")
        a(f"ds_write_b128 v193, {vr(t,4)} offset:{48+1024*i}")
        for j in range(4): a(f"v_alignbit_b32 v{t+4+j}, v{e+j+2}, v{e+j+1}, 16")
        a(f"ds_write_b128 v193, {vr(t+4,4)} offset:{2*FC_STRIDE+48+1024*i}")
        for j in range(4): a(f"v_mov_b32 v{t+8+j}, v{e+j+1}")
        a(f"ds_write_b128 v193, {vr(t+8,4)} offset:{FC_STRIDE+48+1024*i}")
    a(f"""
    v_mov_b32 v1, v190
    v_and_b32 v2, 15, v0
    v_lshrrev_b32 v3, 4, v0
    v_add_u32 v6, 8, v1
    v_and_b32 v8, 1, v2
    v_lshlrev_b32 v8, 2, v8
    v_lshrrev_b32 v9, 1, v2
    v_lshl_add_u32 v8, v9, 5, v8
    v_lshl_add_u32 v8, v3, 3, v8           ; P0'
    v_lshlrev_b32 v12, 1, v8
    v_lshlrev_b32 v13, 2, v8
    v_add_u32 v13, {ST_LDS2}, v13
    s_lshl_b32 s31, s3, 12
    s_add_u32 s31, s31, {XT_LDS}
    v_add_u32 v7, s31, v12
    v_and_b32 v9, 3, v2
    v_mul_u32_u24 v9, {FC_STRIDE}, v9
    v_lshrrev_b32 v10, 2, v2
    v_add_u32 v10, v10, v3
    v_lshl_add_u32 v14, v10, 4, v9
    v_add_u32 v14, s30, v14                ; A addr
    v_and_b32 v9, 1, v2
    v_mul_u32_u24 v9, {U1_OFF-U0_OFF}, v9
    v_lshrrev_b32 v10, 1, v2
    v_lshlrev_b32 v10, 2, v10
    v_sub_u32 v10, v3, v10
    v_add_u32 v10, 28, v10
    v_lshl_add_u32 v15, v10, 4, v9
    s_add_u32 s32, s30, {U0_OFF}
    v_add_u32 v15, s32, v15                ; B addr
    v_sub_u32 v11, {2044-1792}, v8
    v_lshlrev_b32 v11, 1, v11
    s_add_u32 s32, s30, {U1_OFF}
    v_add_u32 v11, s32, v11
    s_add_u32 s20, s{P_WS}, s29
    s_addc_u32 s21, s{P_WS+1}, 0
    s_mov_b32 s22, 4096
    s_mov_b32 s23, 0x20000
    s_mul_i32 s41, s28, {HS}
    s_add_u32 s41, s41, {WS_HT}
    s_add_u32 m0, s30, {U1_OFF}
    """)
    ACC = 16
    for i in range(32): a(f"v_mov_b32 v{ACC+i}, 0")
    BUF = [48, 112]
    a("s_waitcnt lgkmcnt(0)")
    for i in range(8): a(f"ds_read_b128 {vr(BUF[0]+4*i,4)}, v14 offset:{512*i}")
    a("s_cmp_lg_u32 s3, 3\ns_cbranch_scc1 M_NOS1")
    lds_wait(0, n=7)
    arrive_s1()
    lds_set(1)
    a("s_branch M_S1OK\nM_NOS1:")
    lds_wait(1)
    a("M_S1OK:")
    mstamp(3)
    for i in range(4):
        a(f"buffer_load_dwordx4 v1, s[20:23], 0 offen offset:{1024*i} {SC} lds")
    a(f"s_add_u32 m0, s30, {U0_OFF}\ns_nop 0")
    for i in range(4):
        a(f"buffer_load_dwordx4 v6, s[20:23], 0 offen offset:{1024*i} {SC} lds")
    a("s_waitcnt vmcnt(0)")
    mstamp(4)
    lds_add(7)
    def reads(buf, nu):
        A = [f"ds_read_b128 {vr(BUF[buf]+4*i,4)}, v14 offset:{512*i+64*nu}" for i in range(8)]
        B = [f"ds_read_b128 {vr(BUF[buf]+32+4*i,4)}, v15 offset:{512*(7-i)+64*nu}" for i in range(8)]
        return [A[0]] + B + A[1:]
    def mfmas(buf):
        out = []
        for mu in range(8):
            for tau in range(8-mu):
                t = mu + tau
                out.append(f"v_mfma_f32_16x16x32_bf16 {vr(ACC+4*t,4)}, {vr(BUF[buf]+4*mu,4)}, {vr(BUF[buf]+32+4*tau,4)}, {vr(ACC+4*t,4)}")
        return out
    for i in range(8): a(f"ds_read_b128 {vr(BUF[0]+32+4*i,4)}, v15 offset:{512*(7-i)}")
    a("s_mov_b32 s46, 0")
    a("M2_LOOP:")
    for half in range(2):
        a("s_waitcnt lgkmcnt(0)")
        rs = reads(1-half, half+1)
        ms = mfmas(half)
        for i, m in enumerate(ms):
            a(m)
            if i % 2 == 0 and rs: a(rs.pop(0))
            if half == 1 and i == 33:
                a("v_add_u32 v14, 128, v14\nv_add_u32 v15, 128, v15\ns_add_u32 s46, s46, 1\ns_cmp_lt_u32 s46, 4")
    a("s_cbranch_scc1 M2_LOOP")
    a("s_waitcnt lgkmcnt(0)")
    mstamp(5)
    UR_, RR, CR, XR = 48, 64, 96, 160
    for t in range(8): a(f"ds_read_b64 {vr(UR_+2*t,2)}, v11 offset:{512*(7-t)}")
    lds_wait(8)
    for t in range(8):
        a(f"ds_read_b64 {vr(XR+2*t,2)}, v7 offset:{512*t}")
        a(f"ds_read_b128 {vr(RR+4*t,4)}, v13 offset:{1024*t}")
        a(f"ds_read_b128 {vr(CR+4*t,4)}, v13 offset:{8192+1024*t}")
    a(f"""
    s_lshl_b32 s36, s28, 4
    s_and_b32 s36, s36, 16
    s_lshr_b32 s37, s37, s36
    s_lshl_b32 s37, s37, 16
    v_add_u32 v9, s30, v12
    s_waitcnt lgkmcnt(0)
    """)
    for t in range(8):
        u0, u1 = UR_+2*t, UR_+2*t+1
        x0, x1 = XR+2*t, XR+2*t+1
        Tt = 128 + 16*(t & 1)
        a(f"""
        v_and_b32 v{Tt+0}, s40, v{u1}
        v_lshlrev_b32 v{Tt+1}, 16, v{u1}
        v_and_b32 v{Tt+2}, s40, v{u0}
        v_lshlrev_b32 v{Tt+3}, 16, v{u0}
        v_lshlrev_b32 v{Tt+4}, 16, v{x0}
        v_and_b32 v{Tt+5}, s40, v{x0}
        v_lshlrev_b32 v{Tt+6}, 16, v{x1}
        v_and_b32 v{Tt+7}, s40, v{x1}
        """)
        for j in range(4):
            a(f"v_fmac_f32 v{ACC+4*t+j}, s37, v{Tt+j}")
        for j in (0, 2):
            a(f"v_pk_fma_f32 {vr(Tt+8+j,2)}, {vr(Tt+4+j,2)}, {vr(RR+4*t+j,2)}, {vr(CR+4*t+j,2)}")
        for j in (0, 2):
            a(f"v_pk_fma_f32 {vr(Tt+j,2)}, {vr(ACC+4*t+j,2)}, {vr(Tt+8+j,2)}, {vr(Tt+4+j,2)}")
        a(f"""
        v_cvt_pk_bf16_f32 v{Tt+12}, v{Tt+0}, v{Tt+1}
        v_cvt_pk_bf16_f32 v{Tt+13}, v{Tt+2}, v{Tt+3}
        """)
        a(f"ds_write_b64 v9, {vr(Tt+12,2)} offset:{512*t}")
        if t & 1:
            k = t >> 1
            a(f"ds_read_b128 {vr(176+4*k,4)}, v193 offset:{1024*k}")
            if k: a(f"s_waitcnt lgkmcnt(3)\nbuffer_store_dwordx4 {vr(176+4*(k-1),4)}, v1, {WSS}, s41 offen offset:{1024*(k-1)} {SC}")
    a(f"s_waitcnt lgkmcnt(0)\nbuffer_store_dwordx4 {vr(188,4)}, v1, {WSS}, s41 offen offset:3072 {SC}")
    a("s_waitcnt vmcnt(0)")
    mstamp(6)
    lds_last(6, 4, "M_NOS2")
    a(f"""
    s_lshr_b32 s38, s{RID}, 4
    s_lshl_b32 s39, s38, 2
    s_add_u32 s39, s39, {R2B}
    s_lshl_b32 s38, s38, 7
    s_add_u32 s38, s38, {C2B}
    """)
    arrive(WSS, "s38", 16, "s39", 16)
    a("M_NOS2:\ns_branch M_P2")
    a(f"""
    M_LOWNC:
    s_cmp_lg_u32 s3, 3
    s_cbranch_scc1 M_PACK
    """)
    lds_wait(0, n=7)
    arrive_s1()
    lds_set(1)
    a("s_branch M_PACK")
    a(f"""
    M_UPPER:
    s_mov_b32 s41, 0x05040100
    s_mov_b32 s42, 0x07060302
    v_lshl_add_u32 v5, v7, 3, v5
    s_lshl_b32 s31, s38, 1
    s_waitcnt lgkmcnt(0)
    s_mov_b32 s{WSR}, s{P_WS}
    s_mov_b32 s{WSR+1}, s{P_WS+1}
    s_mov_b32 s{DBR}, s{P_DBG}
    s_mov_b32 s{DBR+1}, s{P_DBG+1}
    """)
    srd(16, P_X, NB_SD)
    a(f"""
    s_cmp_eq_u32 s3, 7
    s_cbranch_scc1 M_STATS
    s_getpc_b64 s[44:45]
    M_PCREF:
    s_sub_u32 s44, s44, M_PCREF-{KNAME}
    s_subb_u32 s45, s45, 0
    s_lshl_b32 s46, s5, 13
    v_lshlrev_b32 v8, 7, v0
    v_add_u32 v8, s46, v8
    v_min_u32 v8, M_CODE_END-{KNAME}-4, v8
    {"global_load_dword v9, v8, s[44:45]" if os.environ.get("NOCPF") != "1" else "s_nop 0"}
    s_lshr_b32 s46, s2, 3
    s_add_u32 s46, s46, s5
    s_and_b32 s46, s46, 7
    s_lshl_b32 s46, s46, 22
    v_lshlrev_b32 v10, 16, v0
    {f"buffer_load_dword v11, v10, {WSS}, s46 offen sc1" if os.environ.get("TLB") == "1" else "s_nop 0"}
    s_barrier                 ; B_init
    """)
    if os.environ.get("XG") == "1": lds_wait(5, n=4)
    if os.environ.get("XG") == "2": lds_wait(0, n=4)
    for i in range(4):
        a(f"buffer_load_dwordx4 {vr(52+4*i,4)}, v1, s[16:19], 0 offen offset:{i*1280}")
    a("s_mov_b32 s44, 0x05040100\ns_waitcnt vmcnt(0)")
    for e in range(8):
        j, h = e >> 1, e & 1
        selr = "s42" if h else "s44"
        a(f"v_perm_b32 v{8+2*e}, v{52+4+j}, v{52+j}, {selr}")
        a(f"v_perm_b32 v{9+2*e}, v{52+12+j}, v{52+8+j}, {selr}")
        a(f"ds_write_b64 v5, {vr(8+2*e,2)} offset:{TRS*e}")
    tile_store(WS_XT, 31, 24)
    a("s_branch M_UPDONE")
    a(f"""
    M_STATS:
    s_and_b32 s36, s2, 31
    s_lshl_b32 s36, s36, 6
    s_lshr_b32 s37, s2, 5
    s_lshl_b32 s37, s37, 3
    s_add_u32 s36, s36, s37
    v_and_b32 v6, 15, v0
    v_lshrrev_b32 v7, 4, v0
    v_add_u32 v7, s36, v7
    v_mul_u32_u24 v1, 1280, v7
    v_lshl_add_u32 v1, v6, 4, v1
    v_add_u32 v2, 5120, v1
    v_lshlrev_b32 v5, 2, v7
    v_add_u32 v5, {WS_R1}, v5
    v_lshl_add_u32 v5, v6, 13, v5
    v_cmp_lt_u32 vcc, 1, v6
    v_mov_b32 v8, 0x80000000
    v_lshlrev_b32 v9, 4, v0
    v_cndmask_b32 v5, v5, v8, vcc
    v_add_u32 v9, {WS_CNT}, v9
    v_mov_b32 v100, 0
    v_mov_b32 v101, 0
    v_mov_b32 v102, 0
    v_mov_b32 v103, 0
    s_and_b32 s36, s2, 31
    s_cmp_lg_u32 s36, 0
    s_cbranch_scc1 M_NOZERO0
    s_lshr_b32 s39, s2, 5
    s_mul_i32 s36, s39, 9216
    s_add_u32 s37, s36, 4096
    s_add_u32 s38, s36, 8192
    s_lshl_b32 s39, s39, 10
    s_add_u32 s39, s39, {G1B - WS_CNT}
    """)
    for i in range(9):
        a(f"buffer_store_dwordx4 v[100:103], v9, {WSS}, {['s36','s37','s38'][i>>2]} offen offset:{1024*(i&3)} {SCS}")
    a(f"""
    buffer_store_dwordx4 v[100:103], v9, {WSS}, s39 offen {SCS}
    M_NOZERO0:
    s_barrier                 ; B_init
    M_NOZERO:
    """)
    if os.environ.get("XG") == "1": lds_wait(5, n=4)
    if os.environ.get("XG") == "2": lds_wait(0, n=4)
    for p in range(2):
        for i in range(5):
            a(f"buffer_load_dwordx4 {vr(16+20*p+4*i,4)}, v{1+p}, s[16:19], 0 offen offset:{i*256}")
    a("s_waitcnt vmcnt(0)")
    a("v_cmp_eq_u32 vcc, 0, v6")
    for p in range(2):
        for i in range(20):
            r = 16 + 20*p + i
            a(f"v_dot2_f32_bf16 v{100+2*p}, v{r}, s43, v{100+2*p}")
            a(f"v_dot2_f32_bf16 v{101+2*p}, v{r}, v{r}, v{101+2*p}")
    a("s_nop 2")
    for sh in (8, 4, 2, 1):
        for r in range(100, 104):
            a(f"v_add_f32_dpp v{r}, v{r}, v{r} row_ror:{sh} row_mask:0xf bank_mask:0xf")
    a(f"s_mov_b32 s44, {hexf(1.0/640)}\ns_mov_b32 s45, {hexf(1e-5)}")
    for p in range(2):
        sm, sq = 100+2*p, 101+2*p
        a(f"""
        v_mul_f32 v{sm}, s44, v{sm}
        v_mul_f32 v{sq}, s44, v{sq}
        v_fma_f32 v{sq}, -v{sm}, v{sm}, v{sq}
        v_max_f32 v{sq}, 0, v{sq}
        v_add_f32 v{sq}, s45, v{sq}
        v_rsq_f32 v{sq}, v{sq}
        s_nop 0
        v_mul_f32 v{sm}, v{sm}, v{sq}
        v_sub_f32 v{sm}, 0, v{sm}
        v_cndmask_b32 v{sm}, v{sm}, v{sq}, vcc
        buffer_store_dword v{sm}, v5, {WSS}, 0 offen offset:{16*p} {SC}
        """)
    a(f"""
    M_UPDONE:
    s_waitcnt vmcnt(0)
    """)
    mstamp(2)
    lds_add(0)
    a(f"""
    s_cmp_lg_u32 s3, 4
    s_cbranch_scc1 M_UPNA
    v_lshlrev_b32 v1, 4, v0
    s_mov_b32 s36, {WS_R1}
    s_lshl_b32 s37, s{RID}, 14
    s_add_u32 s37, s37, {WS_XT}
    """)
    lds_wait(1)
    mstamp(3)
    a(f"""
    v_mov_b32 v246, {SY_LDS + 52}
    ds_read_b32 v247, v246
    s_waitcnt lgkmcnt(0)
    v_cmp_eq_u32 vcc, 0, v247
    s_cbranch_vccnz M_NOTOP
    """)
    arr_begin(DBS, 64, 8, "M_NOTOP")
    release8(256)
    a("M_NOTOP:")
    def dma4(blk0, src):
        for blk in range(blk0, blk0 + 4):
            a(f"s_mov_b32 m0, {ST_LDS2 + blk*4096}\ns_nop 0")
            for i in range(4):
                a(f"buffer_load_dwordx4 v1, {WSS}, s{src} offen offset:{1024*i} {SC} lds")
            a(f"s_add_u32 s{src}, s{src}, 4096")
    a(f"s_cmp_ge_u32 s{RID}, {NCONV}\ns_cbranch_scc1 M_NOXD")
    lds_wait(7, n=4)
    dma4(4, 37)
    a("M_NOXD:")
    pollgrp(256)
    lds_set(3)
    lds_set(4)
    a(f"s_cmp_ge_u32 s{RID}, {NCONV}\ns_cbranch_scc1 M_PACK")
    mstamp(4)
    dma4(0, 36)
    a("s_waitcnt vmcnt(0)")
    mstamp(5)
    lds_set(8)
    a(f"""
    s_branch M_UPC
    M_UPNA:
    s_cmp_ge_u32 s{RID}, {NCONV}
    s_cbranch_scc1 M_PACK
    M_UPC:
    """)
    def wtouch():
        return
        a(f"""
        s_and_b32 s8, s3, 3
        s_lshl_b32 s8, s8, 6
        v_add_u32 v8, s8, v0                   ; idx
        v_mul_u32_u24 v9, 171, v8
        v_lshrrev_b32 v9, 11, v9
        v_mul_u32_u24 v10, 12, v9
        v_sub_u32 v10, v8, v10
        v_mul_u32_u24 v9, 3072, v9
        v_lshl_add_u32 v9, v10, 7, v9
        v_cmp_gt_u32 vcc, 240, v8
        v_mov_b32 v10, 0x40000000
        s_lshr_b32 s8, s2, 3
        s_mul_i32 s8, s8, {20*3072}
        s_bfe_u32 s12, s2, 0x10002
        s_mul_i32 s12, s12, 1536
        s_add_u32 s8, s8, s12
        v_cndmask_b32 v9, v10, v9, vcc
        """)
        srd(16, P_WG, D*F*2); srd(20, P_WU, D*F*2)
        a("buffer_load_dword v11, v9, s[16:19], s8 offen\nbuffer_load_dword v12, v9, s[20:23], s8 offen")
    lds_wait(8)
    a(f"""
    M_W4PRE:
    s_and_b32 s8, s2, 7
    s_lshr_b32 s7, s8, 2
    s_lshl_b32 s7, s7, 3
    s_lshr_b32 s8, s2, 5
    s_add_u32 s7, s7, s8                   ; fb
    s_lshr_b32 s12, s7, 1
    s_mul_i32 s8, s12, {48*5120}
    s_add_u32 s8, s8, {WS_WP2}
    s_mul_i32 s12, s3, {6*5120}
    s_add_u32 s31, s8, s12
    v_lshlrev_b32 v4, 4, v0
    """)
    lds_last(12, 1, "M_W4W")
    lds_wait(1)
    pollgrp(384)
    lds_set(11)
    a("M_W4W:")
    lds_wait(11)
    wtouch()
    for q in range(30):
        a(f"buffer_load_dwordx4 {vr(86+4*q,4)}, v4, {WSS}, s31 offen offset:{1024*(q&3)} {SC}")
        if q & 3 == 3: a("s_add_u32 s31, s31, 4096")
    mstamp(6)
    a(f"""
    s_branch M_P2
    """)
    a(f"""
    M_PACK:
    s_sub_u32 s28, s{RID}, {NCONV}
    s_mul_i32 s33, s28, 3
    s_add_u32 s33, s33, s3
    s_add_u32 s33, s33, 480
    s_min_u32 s33, s33, 720
    s_mul_i32 s34, s28, 5
    s_add_u32 s34, s34, s3
    s_sub_u32 s34, s34, 3
    s_cmp_lt_u32 s3, 3
    s_cselect_b32 s28, s33, s34
    v_lshlrev_b32 v1, 4, v0
    v_lshrrev_b32 v3, 4, v0
    s_lshl_b32 s30, s3, 13
    s_mov_b32 s19, 0x20000
    s_mov_b32 s23, 0x20000
    v_and_b32 v28, 1, v3
    v_lshlrev_b32 v28, 12, v28
    v_lshrrev_b32 v29, 1, v3
    v_bfe_u32 v30, v0, 2, 2
    v_lshl_add_u32 v29, v29, 3, v30
    v_lshl_add_u32 v28, v29, 7, v28
    v_and_b32 v29, 3, v0
    v_lshl_add_u32 v28, v29, 3, v28
    v_add_u32 v28, s30, v28
    v_lshlrev_b32 v29, 2, v0
    v_cmp_gt_u32 vcc, 32, v0
    v_mov_b32 v30, 0x40000000
    v_lshrrev_b32 v31, 3, v0
    v_cndmask_b32 v29, v30, v29, vcc
    v_lshrrev_b32 v26, 5, v0
    v_and_b32 v27, 7, v0
    s_sub_u32 s45, s28, 480
    s_cmp_ge_u32 s28, 480
    """)
    SB = 52
    a("\n".join([sel(44,"s45","s28"), sel(45,10,24), sel(46,(65536+9)//10,(65536+23)//24),
                 sel(47,64*1280,32*3072), sel(48,1280,3072), sel(49,4,0),
                 sel(50,16*1280,8*3072), sel(51,5,6), sel(SB+4,5120,6144),
                 sel(60,48,40), sel(61,WS_WP2,0x40000000), sel(62,(65536+4)//5,(65536+5)//6),
                 f"s_cselect_b32 s16, s{P_WD}, s{P_WG}\ns_cselect_b32 s17, s{P_WD+1}, s{P_WG+1}\ns_cselect_b32 s20, s{P_WD}, s{P_WU}\ns_cselect_b32 s21, s{P_WD+1}, s{P_WU+1}",
                 sel(31,5120,0), sel(32,0x40000000,CSA)]))
    a(f"""
    s_cmp_lt_u32 s28, {0 if os.environ.get('E3') else 720}
    s_cselect_b32 s18, {D*F*2}, 0
    s_cselect_b32 s33, 0, 0x40000000
    s_mov_b32 s22, s18
    s_add_u32 s61, s61, s33
    s_mul_i32 s46, s44, s46
    s_lshr_b32 s46, s46, 16
    s_mul_i32 s45, s46, s45
    s_sub_u32 s45, s44, s45
    s_mul_i32 s47, s46, s47
    s_lshl_b32 s33, s45, 7
    s_add_u32 s47, s47, s33
    v_mad_u32_u24 v25, v26, s49, v31
    v_mul_u32_u24 v25, s48, v25
    v_lshl_add_u32 v25, v27, 4, v25
    s_add_u32 s31, s31, s47
    """)
    if os.environ.get("W2G") == "1": lds_wait(1)
    a(f"s_cmp_lt_u32 s3, 3\ns_cbranch_scc1 M_NOGATE")
    lds_wait(1)
    a("M_NOGATE:")
    for q in range(8):
        sr = 47 if q < 4 else 31
        a(f"s_add_u32 m0, s30, {q*1024}\ns_nop 0\nbuffer_load_dwordx4 v25, s[{16+4*(q>>2)}:{19+4*(q>>2)}], s{sr} offen lds\ns_add_u32 s{sr}, s{sr}, s50")
    for b in range(4):
        a(f"""
        s_lshl_b32 s33, s45, 2
        s_add_u32 s33, s33, {b}
        s_mul_i32 s34, s33, s62
        s_lshr_b32 s34, s34, 16
        s_mul_i32 s35, s34, s51
        s_sub_u32 s35, s33, s35
        s_mul_i32 s34, s34, s60
        s_lshl_b32 s33, s46, 1
        s_add_u32 s34, s34, s33
        s_mul_i32 s34, s34, s51
        s_add_u32 s34, s34, s35
        s_lshl_b32 s34, s34, 10
        s_add_u32 s{SB+b}, s34, s61
        """)
    a(f"s_lshl_b32 s34, s45, 9\ns_add_u32 s{SB+5}, s34, s32")
    a("s_waitcnt vmcnt(0)")
    mstamp(3)
    R0 = 32
    for aa in range(2):
        for b in range(4):
            R = R0 + 4*(aa*4+b)
            for x in range(2):
                a(f"ds_read_b64_tr_b16 {vr(R+2*x,2)}, v28 offset:{aa*2048 + x*512 + b*32}")
    C0 = 16
    for b in range(4): a(f"v_mov_b32 v{C0+b}, 0")
    a("s_waitcnt lgkmcnt(0)")
    for aa in range(2):
        for b in range(4):
            R = R0 + 4*(aa*4+b)
            a(f"buffer_store_dwordx4 {vr(R,4)}, v1, {WSS}, s{SB+b} offen {SC}")
            if aa == 0: a(f"s_add_u32 s{SB+b}, s{SB+b}, s{SB+4}")
            for e in range(4):
                a(f"v_dot2_f32_bf16 v{C0+b}, v{R+e}, s43, v{C0+b}")
    a("s_nop 2")
    for b in range(4): a(f"v_mov_b32 v{C0+4+b}, v{C0+b}")
    a("s_nop 1")
    for b in range(4): a(f"v_permlane32_swap_b32 v{C0+b}, v{C0+4+b}")
    a("s_nop 1")
    for b in range(4): a(f"v_add_f32 v{C0+b}, v{C0+b}, v{C0+4+b}")
    a("s_cmp_lt_u32 s3, 3\ns_cbranch_scc1 M_NOW3")
    lds_wait(3)
    a("M_NOW3:")
    for b in range(4): a(f"buffer_atomic_add_f32 v{C0+b}, v29, {WSS}, s{SB+5} offen offset:{128*b} sc1")
    a("s_waitcnt vmcnt(0)")
    mstamp(4)
    a("s_cmp_lt_u32 s3, 3\ns_cbranch_scc1 M_ARRW")
    lds_last(9, 5, "M_PKD")
    arrive(WSS, C2AW, 96, FLG + 12, 256)
    a("M_PKD:\ns_cmp_ge_u32 s3, 4\ns_cbranch_scc1 M_W4PRE\ns_branch M_P2\nM_ARRW:")
    lds_last(10, 3, "M_P2")
    lds_wait(1)
    a(f"s_lshr_b32 s38, s2, 5\ns_lshl_b32 s38, s38, 10\ns_add_u32 s38, s38, {G1B + 128}")
    arr_begin(WSS, "s38", 12, "M_P2")
    arr_begin(DBS, 192, 8, "M_P2")
    release8(384)
    a("M_P2:\ns_barrier                  ; B_e")
    from mega34 import p34
    p34()
    a("M_END:")
    a.end(name, 256, 102)
    a("M_CODE_END:")
    a.launches.append(f"; @launch grid=(256,1,1) block=(512,1,1) lds={LDS_TOTAL}")
```

```python
from mega import *

FS_LDS = None
def mstamp13():
    if not os.environ.get('FST'): mstamp(13)
def p34():
    UREG = 12288 + 32
    FS = ST_LDS + 16384 - 1024 + 0
    FSL = SY_LDS + 64
    a(f"""
    M3_START:
    s_and_b32 s8, s2, 7                    ; xcd
    s_lshr_b32 s5, s2, 3                   ; j
    s_and_b32 s6, s8, 3
    s_lshl_b32 s6, s6, 2
    s_and_b32 s7, s5, 3
    s_add_u32 s6, s6, s7                   ; sb
    s_lshr_b32 s7, s8, 2
    s_lshl_b32 s7, s7, 3
    s_lshr_b32 s8, s5, 2
    s_add_u32 s7, s7, s8                   ; fb
    v_mov_b32 v2, v0
    v_lshlrev_b32 v4, 4, v2                ; lane*16
    v_lshrrev_b32 v5, 4, v2                ; G
    """)
    mstamp(7)
    a(f"""
    s_cmp_lt_u32 s3, 4
    s_cbranch_scc1 M3_CONS
    """)
    a(f"""
    s_sub_u32 s9, s3, 4                    ; p
    s_mul_i32 s33, s9, {16*3072}
    s_mul_i32 s8, s7, 192
    s_add_u32 s33, s33, s8
    s_mul_i32 s30, s9, 3072
    """)
    srd(16, P_WG, D*F*2); srd(24, P_WU, D*F*2)
    WO = 52
    for j in range(3):
        a(f"""
        v_add_u32 v13, {64*j}, v2
        v_mul_u32_u24 v14, 171, v13
        v_lshrrev_b32 v14, 11, v14
        v_mul_u32_u24 v15, 12, v14
        v_sub_u32 v13, v13, v15
        v_mul_u32_u24 v14, 3072, v14
        v_lshl_add_u32 v{WO+j}, v13, 4, v14
        """)
        if j: a(f"v_add_u32 v{WO+j}, {(-1024*j) & 0xffffffff}, v{WO+j}")
    def dmaW(sb):
        o = [f"s_add_u32 m0, s{sb}, s30", "s_nop 0"]
        for j in range(3):
            o.append(f"buffer_load_dwordx4 v{WO+j}, s[16:19], s33 offen offset:{1024*j} lds")
        o += [f"s_add_u32 m0, m0, {UREG}", "s_nop 0"]
        for j in range(3):
            o.append(f"buffer_load_dwordx4 v{WO+j}, s[24:27], s33 offen offset:{1024*j} lds")
        o.append(f"s_add_u32 s33, s33, {64*3072}")
        return o
    def dmaH(sb):
        o = [f"s_add_u32 m0, s{sb}, s32", f"s_add_u32 s35, s34, {4*HS-1024}",
             f"buffer_load_dwordx4 v6, s[20:23], s34 offen {SC} lds"]
        for i in range(1, 4):
            o.append(f"buffer_load_dwordx4 v6, s[20:23], s35 offen offset:{1024*i} {SC} lds")
            if i < 3: o.append(f"s_add_u32 s35, s35, {4*HS-1024}")
        o.append(f"s_add_u32 s34, s34, {64*HS}")
        return o
    for st in range(3):
        a(f"s_mov_b32 s36, {st*STG}")
        for l in dmaW(36): a(l)
    WS_SP = 0x500000
    WR = 86
    class VM:
        def __init__(s): s.q = []
        def issue(s, tag, n=1): s.q += [tag] * n
        def wait(s, tag):
            last = max(i for i, t in enumerate(s.q) if t == tag)
            n = len(s.q) - 1 - last
            s.q = s.q[last+1:]
            return f"s_waitcnt vmcnt({n})"
    vm = VM()
    for st in range(3): vm.issue(("W", st), 6)
    a(f"""
    s_lshl_b32 s8, s6, 8
    s_add_u32 s8, s8, {WS_HT}
    s_add_u32 s20, s{P_WS}, s8
    s_addc_u32 s21, s{P_WS+1}, 0
    s_mov_b32 s22, {639*HS+256}
    s_mov_b32 s23, 0x20000
    v_and_b32 v6, 15, v2
    v_lshlrev_b32 v7, 2, v5
    v_xor_b32 v6, v6, v7
    v_lshlrev_b32 v6, 4, v6
    v_mul_u32_u24 v7, {HS}, v5
    v_add_u32 v6, v7, v6
    s_mul_i32 s34, s9, {16*HS}
    s_lshl_b32 s32, s9, 12
    s_add_u32 s32, s32, {HOFF}
    s_lshl_b32 s4, s2, 7
    s_add_u32 s4, s4, {FLG + 12}
    v_mov_b32 v247, s4                     ; CS flag addr
    s_lshl_b32 s8, s9, 8
    v_lshl_add_u32 v3, v2, 2, s8           ; ptid*4
    v_add_u32 v10, {ST_LDS}, v3
    s_mul_i32 s10, s7, 768
    s_add_u32 s10, s10, {CSA}
    s_lshr_b32 s12, s7, 1
    s_mul_i32 s8, s12, {48*5120}
    s_add_u32 s8, s8, {WS_WP2}
    s_mul_i32 s12, s3, {6*5120}
    s_add_u32 s31, s8, s12
    s_mul_i32 s12, s9, 10240
    s_add_u32 s29, s8, s12
    s_lshl_b32 s12, s6, 10
    s_add_u32 s11, s12, {SPA}
    s_lshl_b32 s13, s6, 7
    s_add_u32 s13, s13, {C3 + 4}
    v_mov_b32 v245, s13
    v_mov_b32 v244, 1
    s_mul_i32 s14, s9, 10240
    v_add_u32 v246, -4, v247               ; S2w flag addr (word 2)
    s_mul_i32 s39, s7, 40
    s_mul_i32 s41, s9, 10
    s_add_u32 s39, s39, s41
    s_mul_i32 s39, s39, {HS}
    s_lshl_b32 s41, s6, 8
    s_add_u32 s39, s39, s41
    s_add_u32 s39, s39, {WS_HT}
    v_mul_u32_u24 v11, {HS}, v5
    v_and_b32 v12, 15, v2
    v_lshl_add_u32 v11, v12, 4, v11
    v_cmp_gt_u32 vcc, 2, v5
    v_mov_b32 v13, 0x40000000
    s_add_u32 s41, s39, {4*HS}
    s_add_u32 s42, s39, {8*HS}
    v_cndmask_b32 v13, v13, v11, vcc
    v_lshlrev_b32 v12, 5, v12
    v_lshl_add_u32 v12, v5, 10, v12
    s_lshl_b32 s8, s9, 12
    s_add_u32 s8, s8, {ST_LDS}
    v_add_u32 v12, s8, v12
    """)
    def wl(q, sreg=31):
        t = f"buffer_load_dwordx4 {vr(WR+4*q,4)}, v4, {WSS}, s{sreg} offen offset:{1024*(q&3)} {SC}"
        if q & 3 == 3: t += f"\ns_add_u32 s{sreg}, s{sreg}, 4096"
        return t
    a("s_barrier                 ; B_f (S2b released)")
    mstamp(8)
    for st in range(3):
        a(f"s_mov_b32 s36, {st*STG}")
        for l in dmaH(36): a(l)
        vm.issue(("H", st), 4)
    a(f"""
    buffer_load_dwordx4 v[32:35], v11, {WSS}, s39 offen {SC}
    buffer_load_dwordx4 v[36:39], v11, {WSS}, s41 offen {SC}
    buffer_load_dwordx4 v[40:43], v13, {WSS}, s42 offen {SC}
    """)
    vm.issue("slice", 3)
    a(vm.wait(("H", 0)))
    a("s_barrier                 ; B_g")
    mstamp(9)
    SUM, SQ, TMP = 16, 24, 48
    a(vm.wait("slice"))
    for i in range(3):
        for e in range(4):
            d = 32 + 4*i + e
            if i == 0:
                a(f"v_lshlrev_b32 v{SUM+2*e}, 16, v{d}\nv_and_b32 v{SUM+2*e+1}, s40, v{d}")
                a(f"v_mul_f32 v{SQ+2*e}, v{SUM+2*e}, v{SUM+2*e}\nv_mul_f32 v{SQ+2*e+1}, v{SUM+2*e+1}, v{SUM+2*e+1}")
            else:
                t = TMP + 2*(e & 1)
                a(f"v_lshlrev_b32 v{t}, 16, v{d}\nv_and_b32 v{t+1}, s40, v{d}")
                a(f"v_add_f32 v{SUM+2*e}, v{SUM+2*e}, v{t}\nv_add_f32 v{SUM+2*e+1}, v{SUM+2*e+1}, v{t+1}")
                a(f"v_fmac_f32 v{SQ+2*e}, v{t}, v{t}\nv_fmac_f32 v{SQ+2*e+1}, v{t+1}, v{t+1}")
    a(f"""
    ds_write_b128 v12, {vr(SUM,4)}
    ds_write_b128 v12, {vr(SUM+4,4)} offset:16
    ds_write_b128 v12, {vr(SQ,4)} offset:512
    ds_write_b128 v12, {vr(SQ+4,4)} offset:528
    s_waitcnt lgkmcnt(0)
    """)
    wq = 0
    for i in range(10):
        if i < 9:
            tag = ("H", i+1) if i + 1 < 3 else ("S", i+1)
            if tag in vm.q: a(vm.wait(tag))
        a(f"s_barrier                 ; loop {i}")
        if os.environ.get("LST") and i in (0, 2, 4, 6, 8, 9): mstamp({0:1, 2:2, 4:3, 6:4, 8:5, 9:6}[i])
        if i <= 6:
            a(f"s_mov_b32 s36, {(i % 3)*STG}")
            for l in dmaH(36) + dmaW(36): a(l)
            vm.issue(("S", i+3), 10)
        if i == 0:
            for sl in range(16): a(f"ds_read_b32 v{16+sl}, v10 offset:{1024*sl}")
        if i == 0:
            a("s_waitcnt lgkmcnt(0)")
            for st_ in (8, 4, 2, 1):
                for k_ in range(st_): a(f"v_add_f32 v{16+k_}, v{16+k_}, v{16+k_+st_}")
            a(f"buffer_atomic_add_f32 v16, v3, {WSS}, s11 offen sc1"); vm.issue("sp")
        if i == 3:
            assert "sp" not in vm.q
            a(f"""
            s_cmp_lg_u32 s3, 4
            s_cselect_b64 exec, 0, 1
            s_cbranch_scc1 M3P_NOAT
            buffer_atomic_add v244, v245, {WSS}, 0 offen sc1
            M3P_NOAT:
            s_mov_b64 exec, -1
            """)
        if i == 3:
            a(f"buffer_load_dword v252, v247, {WSS}, 0 offen sc1"); vm.issue("flag")
        if i == 5:
            if "flag" in vm.q: a(vm.wait("flag"))
            a("v_cmp_eq_u32 vcc, 0, v252\ns_cbranch_vccz M3P_FLAGOK")
            poll(WSS, 247, "1", 1)
            a("M3P_FLAGOK:")
            a(f"buffer_load_dword v60, v3, {WSS}, s10 offen {SC}"); vm.issue("cs")
        if i == 5:
            a(f"buffer_load_dword v251, v245, {WSS}, 0 offen sc1"); vm.issue("cnt")
        if i == 7:
            if "cnt" in vm.q: a(vm.wait("cnt"))
            a("v_cmp_gt_u32 vcc, 16, v251\ns_cbranch_vccz M3P_CNTOK")
            poll(WSS, 245, "1", 16)
            a("M3P_CNTOK:")
            a(f"buffer_load_dword v16, v3, {WSS}, s11 offen {SC}"); vm.issue("gp")
            a(f"v_add_u32 v11, {CS_LDS}, v3\nds_write_b32 v11, v60")
        if i == 8:
            a(vm.wait("gp"))
            a(f"v_mul_f32 v16, {hexf(1.0/640)}, v16\nv_add_u32 v11, {FSL}, v3\nds_write_b32 v11, v16\ns_waitcnt lgkmcnt(0)")
        if i >= 7:
            buf = (i % 3) * STG
            a(f"s_add_u32 m0, s14, {buf}\ns_add_u32 s15, s29, 4096\ns_add_u32 s28, s29, 8192")
            for q in range(10):
                if q in (4, 8): a("s_add_u32 m0, m0, 4096\ns_nop 0")
                a(f"buffer_load_dwordx4 v4, {WSS}, s{[29,15,28][q>>2]} offen offset:{1024*(q&3)} {SC} lds")
            a("s_add_u32 s29, s29, 40960")
            vm.issue(("L", i), 10)
    mstamp(10)
    a(f"""
    s_lshr_b32 s10, s7, 1                  ; db
    s_and_b32 s11, s7, 1
    s_lshl_b32 s8, s6, 1
    s_add_u32 s11, s11, s8                 ; sb64
    s_branch M4_START2
    """)
    a(f"""
    M3_CONS:
    s_and_b32 s37, s3, 1                   ; wm
    s_lshr_b32 s38, s3, 1                  ; wn
    v_bfe_u32 v9, v2, 2, 2                 ; r
    v_lshrrev_b32 v10, 5, v2               ; hi
    v_and_b32 v12, 1, v5                   ; mat / (G&1)
    v_and_b32 v13, 3, v2                   ; c
    v_mul_u32_u24 v7, {UREG}, v12
    v_lshl_add_u32 v8, v10, 3, v9          ; 8hi + r
    v_mul_u32_u24 v8, 192, v8
    v_add_u32 v7, v7, v8
    v_lshl_add_u32 v7, v13, 3, v7
    s_mul_i32 s39, s37, 96
    v_add_u32 v7, s39, v7                  ; A addr
    v_lshl_add_u32 v11, v10, 3, v9
    v_lshlrev_b32 v11, 8, v11
    v_lshl_add_u32 v11, v12, 5, v11
    v_lshl_add_u32 v11, v13, 3, v11
    v_add_u32 v11, {HOFF}, v11
    s_lshl_b32 s39, s38, 1
    v_xor_b32 v12, s39, v9
    v_xor_b32 v13, 1, v12
    v_lshl_add_u32 v9, v12, 6, v11         ; B0
    v_lshl_add_u32 v10, v13, 6, v11        ; B1
    s_and_b32 s39, s2, 15
    s_lshl_b32 s39, s39, 7
    s_add_u32 s39, s39, {R2B}
    v_lshl_add_u32 v14, v2, 2, s39
    s_cmp_lg_u32 s3, 0
    s_cbranch_scc1 M3_NOPOLL
    """)
    poll(WSS, 14, "0x3ff", 1)
    a("M3_NOPOLL:\ns_barrier                 ; B_f")
    mstamp(8)
    ACC = 16
    for i in range(96): a(f"v_mov_b32 v{ACC+i}, 0")
    FB = [116, 136]
    def reads(buf, ks):
        o = []
        F_ = FB[buf]
        def A(i):
            return [f"ds_read_b64_tr_b16 {vr(F_+4*i+2*x,2)}, v160 offset:{(16*ks+4*x)*192+i*32}" for x in range(2)]
        o += A(0)
        for j, vb in enumerate((162, 163)):
            for x in range(2):
                o.append(f"ds_read_b64_tr_b16 {vr(F_+12+4*j+2*x,2)}, v{vb} offset:{ks*4096 + x*1024}")
        o += A(1) + A(2)
        return o
    def mfmas(buf):
        F_ = FB[buf]
        o = []
        for i in range(3):
            for j in range(2):
                c = ACC + 16*(2*i+j)
                o.append(f"v_mfma_f32_32x32x16_bf16 {vr(c,16)}, {vr(F_+4*i,4)}, {vr(F_+12+4*j,4)}, {vr(c,16)}")
        return o
    def interleave(ms, fillers, per=2):
        for m in ms:
            a(m)
            for _ in range(per):
                if fillers: a(fillers.pop(0))
        assert not fillers
    a(f"""
    v_mov_b32 v160, v7
    v_mov_b32 v162, v9
    v_mov_b32 v163, v10
    s_mov_b32 s41, {STG}
    s_mov_b32 s42, 0
    s_setprio 1
    s_waitcnt lgkmcnt(0)
    s_barrier                 ; B_g
    """)
    mstamp(9)
    for l in reads(0, 0): a(l)
    a("M3_LOOP:")
    for ks in range(3):
        a("s_waitcnt lgkmcnt(0)")
        interleave(mfmas(ks & 1), reads((ks+1) & 1, ks+1))
    a(f"""
    v_add_u32 v160, s41, v7
    v_add_u32 v162, s41, v9
    v_add_u32 v163, s41, v10
    s_waitcnt lgkmcnt(0)
    s_barrier
    """)
    rot = [f"s_add_u32 s41, s41, {STG}", f"s_cmp_eq_u32 s41, {3*STG}", f"s_cselect_b32 s41, 0, s41", "s_add_u32 s42, s42, 1", "s_cmp_lt_u32 s42, 10"]
    interleave(mfmas(1), reads(0, 0) + rot, per=3)
    a("s_cbranch_scc1 M3_LOOP")
    CSR = 116
    a(f"""
    s_setprio 0
    v_lshrrev_b32 v10, 5, v2
    v_lshlrev_b32 v11, 4, v10
    s_mul_i32 s39, s37, 384
    s_add_u32 s39, s39, {CS_LDS}
    v_add_u32 v11, s39, v11
    v_and_b32 v13, 31, v2
    s_lshl_b32 s39, s38, 8
    s_add_u32 s39, s39, {FSL}
    v_lshl_add_u32 v13, v13, 2, s39
    v_and_b32 v12, 1, v5
    v_mul_u32_u24 v12, 49152, v12
    v_lshl_add_u32 v12, v10, 8, v12
    v_and_b32 v14, 15, v2
    v_lshl_add_u32 v12, v14, 4, v12
    s_lshl_b32 s43, s6, 3
    s_lshl_b32 s46, s38, 2
    s_add_u32 s43, s43, s46
    s_mul_i32 s43, s43, 49152
    s_mul_i32 s46, s7, 6
    s_mul_i32 s48, s37, 3
    s_add_u32 s46, s46, s48
    s_lshl_b32 s46, s46, 9
    s_add_u32 s43, s43, s46
    s_add_u32 s43, s43, {WS_HH}
    s_add_u32 s46, s43, {2*49152}
    s_mov_b32 s45, {hexf(1e-5)}
    s_waitcnt lgkmcnt(0)
    """)
    mstamp(10)
    P = 164
    a(f"ds_read2_b32 {vr(P,2)}, v13 offset0:0 offset1:32\nds_read2_b32 {vr(P+2,2)}, v13 offset0:128 offset1:160")
    for i in range(3):
        for q in range(4):
            a(f"ds_read_b128 {vr(CSR+16*i+4*q,4)}, v11 offset:{i*128+q*32}")
    a("s_waitcnt lgkmcnt(12)")
    NM, R2 = P+8, P+12
    for j in range(2):
        sm, sq = P+j, P+2+j
        a(f"""
        v_fma_f32 v{sq}, -v{sm}, v{sm}, v{sq}
        v_max_f32 v{sq}, 0, v{sq}
        v_add_f32 v{sq}, s45, v{sq}
        v_rcp_f32 v{R2+2*j}, v{sq}
        v_sub_f32 v{NM+2*j}, 0, v{sm}
        v_sub_f32 v{NM+2*j+1}, 0, v{sm}
        v_mov_b32 v{R2+2*j+1}, v{R2+2*j}
        """)
    HO = 206
    for i in range(3):
        a(f"s_waitcnt lgkmcnt({4*(2-i)})")
        for j in range(2):
            c = ACC + 16*(2*i+j)
            o = HO + 4*(2*i+j)
            for e in range(0, 16, 2):
                a(f"v_pk_fma_f32 {vr(c+e,2)}, {vr(NM+2*j,2)}, {vr(CSR+16*i+e,2)}, {vr(c+e,2)}")
            for e in range(0, 8, 2):
                a(f"v_max_f32 v{c+e}, 0, v{c+e}")
                a(f"v_max_f32 v{c+e+1}, 0, v{c+e+1}")
                a(f"v_pk_mul_f32 {vr(c+8+e,2)}, {vr(R2+2*j,2)}, {vr(c+8+e,2)}")
            for e in range(0, 8, 2):
                a(f"v_pk_mul_f32 {vr(c+e,2)}, {vr(c+e,2)}, {vr(c+8+e,2)}")
            for e in range(4):
                a(f"v_cvt_pk_bf16_f32 v{o+e}, v{c+2*e}, v{c+2*e+1}")
            a(f"buffer_store_dwordx4 {vr(o,4)}, v12, {WSS}, s{43 if j==0 else 46} offen offset:{512*i} {SC}")
    ACC4, WR, HB = 6, 86, 206
    a(f"""
    M4_START:
    s_lshr_b32 s10, s7, 1                  ; db
    s_and_b32 s11, s7, 1
    s_lshl_b32 s8, s6, 1
    s_add_u32 s11, s11, s8                 ; sb64
    """)
    for t in range(3):
        a(f"""
        s_mul_i32 s8, s3, 3
        s_add_u32 s8, s8, {t}
        s_lshr_b32 s12, s8, 2                  ; batch
        s_and_b32 s8, s8, 3
        s_mul_i32 s8, s8, 10240
        s_add_u32 s12, s12, 1
        s_cmp_eq_u32 s12, 3
        s_cselect_b32 s12, 0, s12
        s_mul_i32 s12, s12, {STG}
        s_add_u32 s8, s8, s12
        v_add_u32 v{240+t}, s8, v4
        """)
    a("s_waitcnt vmcnt(0)")
    mstamp(11)
    a("s_barrier                 ; B_h (consumers)")
    for q in range(30):
        a(f"ds_read_b128 {vr(WR+4*q,4)}, v{240+q//10} offset:{1024*(q%10)}")
    a("M4_START2:")
    a(f"""
    v_lshrrev_b32 v5, 3, v2
    v_and_b32 v3, 7, v2
    v_mul_u32_u24 v5, {HS}, v5
    v_lshl_add_u32 v5, v3, 4, v5
    s_mul_i32 s8, s10, {80*HS}
    s_lshl_b32 s12, s11, 7
    s_add_u32 s8, s8, s12
    s_mul_i32 s12, s3, {16*HS}
    s_add_u32 s8, s8, s12
    s_add_u32 s8, s8, {WS_HT}
    s_min_u32 s13, s3, 5
    s_lshl_b32 s12, s13, 11
    s_add_u32 m0, s12, {HT_LDS}
    s_cmp_lt_u32 s3, 5
    s_cselect_b32 s8, s8, 0x40000000
    s_add_u32 s12, s8, {8*HS-1024}
    buffer_load_dwordx4 v5, {WSS}, s8 offen {SC} lds
    buffer_load_dwordx4 v5, {WSS}, s12 offen offset:1024 {SC} lds
    s_mul_i32 s8, s11, {4*49152}
    s_mul_i32 s12, s3, {6*1024}
    s_add_u32 s8, s8, s12
    s_add_u32 s31, s8, {WS_HH}
    s_add_u32 s32, s31, {49152}
    s_add_u32 s33, s31, {2*49152}
    s_add_u32 s34, s31, {3*49152}
    s_lshl_b32 s36, s6, 7
    s_add_u32 s35, s36, {R3}
    s_add_u32 s36, s36, {C3}
    s_lshr_b32 s8, s11, 1
    s_lshl_b32 s8, s8, 7
    s_add_u32 s8, s8, {R3}
    v_mov_b32 v3, s8
    """)
    srd(20, P_OUT, NB_SD)
    a(f"""
    s_cmp_lt_u32 s3, 4
    s_cbranch_scc1 M4_NOPOLL
    s_waitcnt vmcnt(2)
    s_barrier                 ; B_h (producers)
    s_cmp_lg_u32 s3, 4
    s_cbranch_scc1 M4_NOPOLL
    """)
    arrive(WSS, "s36", 16, "s35")
    poll(WSS, 3, "1", 1)
    a("M4_NOPOLL:\ns_waitcnt lgkmcnt(0)\ns_barrier                 ; B_i")
    mstamp(12)
    HL = 0
    for sl in range(3):
        for st in range(4):
            a(f"buffer_load_dwordx4 {vr(HB+16*sl+4*st,4)}, v4, {WSS}, s{31+st} offen offset:{1024*sl} {SC}")
    a(f"s_mul_i32 s8, s3, 12288\nv_add_u32 v1, 3072, v4\nv_add_u32 v3, s8, v4")
    for st in range(4):
        a(f"s_add_u32 m0, s8, {HL + st*3072}\ns_nop 0")
        for j in range(3):
            a(f"buffer_load_dwordx4 v1, {WSS}, s{31+st} offen offset:{1024*j} {SC} lds")
    def mf(sl, order=None):
        b = HB + 16*(sl % 3)
        o = []
        for dt in range(5):
            for st in range(4):
                c = ACC4 + 4*(dt*4+st)
                src = "0" if sl == 0 else vr(c,4)
                o.append(f"v_mfma_f32_16x16x32_bf16 {vr(c,4)}, {vr(WR+20*sl+4*dt,4)}, {vr(b+4*st,4)}, {src}")
        return o
    for sl in range(3):
        a(f"s_waitcnt vmcnt({12 + 4*(2-sl)})")
        for m in mf(sl): a(m)
    a("s_waitcnt vmcnt(0)")
    for sl in range(3, 6):
        for st in range(4):
            a(f"ds_read_b128 {vr(HB+16*(sl%3)+4*st,4)}, v3 offset:{HL + st*3072 + (sl-3)*1024}")
    for sl in (3, 4):
        a(f"s_waitcnt lgkmcnt({4*(5-sl)})")
        for m in mf(sl): a(m)
    mstamp13()
    a(f"""
    v_lshlrev_b32 v5, 3, v2
    v_add_u32 v3, s8, v5
    s_waitcnt lgkmcnt(0)
    """)
    ms = mf(5)
    def wr(t):
        c = ACC4 + 4*t; o = WR + 2*t
        return f"v_cvt_pk_bf16_f32 v{o}, v{c}, v{c+1}\nv_cvt_pk_bf16_f32 v{o+1}, v{c+2}, v{c+3}\nds_write_b64 v3, {vr(o,2)} offset:{512*t}"
    for t, m in enumerate(ms):
        a(m)
        if t >= 8: a(wr(t-8))
    for t in range(12, 20): a(wr(t))
    a(f"""
    s_lshl_b32 s8, s3, 9
    v_add_u32 v5, s8, v5                   ; + w*512
    v_add_u32 v1, 49152, v5
    v_lshrrev_b32 v6, 4, v2
    v_bfe_u32 v7, v2, 2, 2
    v_lshl_add_u32 v6, v6, 2, v7
    v_lshlrev_b32 v6, 7, v6
    v_and_b32 v7, 3, v2
    v_lshl_add_u32 v6, v7, 3, v6
    s_and_b32 s12, s3, 3                   ; st
    s_lshr_b32 s13, s3, 2                  ; dt0
    s_lshl_b32 s8, s12, 5
    s_lshl_b32 s14, s13, 11
    s_add_u32 s8, s8, s14
    s_add_u32 s8, s8, {HT_LDS}
    v_add_u32 v6, s8, v6
    v_and_b32 v7, 15, v2
    v_mul_u32_u24 v7, 1280, v7
    v_lshrrev_b32 v8, 4, v2
    v_lshl_add_u32 v7, v8, 3, v7
    s_lshl_b32 s8, s11, 6
    s_lshl_b32 s14, s12, 4
    s_add_u32 s8, s8, s14
    s_mul_i32 s8, s8, 1280
    s_mul_i32 s14, s10, 160
    s_add_u32 s8, s8, s14
    s_lshl_b32 s14, s13, 5
    s_add_u32 s8, s8, s14
    s_cmp_lt_u32 s3, 4
    s_cselect_b32 s15, s8, 0x40000000
    s_waitcnt vmcnt(0) lgkmcnt(0)
    s_barrier
    """)
    R = 130
    for i in range(3):
        for w in range(8):
            base = "v5" if w < 4 else "v1"
            a(f"ds_read_b64 {vr(R+2*(i*8+w),2)}, {base} offset:{(w&3)*12288 + i*4096}")
        a(f"ds_read_b64_tr_b16 {vr(R+48+2*i,2)}, v6 offset:{i*4096}")
    for i in range(3):
        a(f"s_waitcnt lgkmcnt({min(15, 9*(2-i))})")
        T = 10 + 16*i
        h0, h1 = R+48+2*i, R+49+2*i
        a(f"""
        v_lshlrev_b32 v{T}, 16, v{h0}
        v_and_b32 v{T+1}, s40, v{h0}
        v_lshlrev_b32 v{T+2}, 16, v{h1}
        v_and_b32 v{T+3}, s40, v{h1}
        """)
        for w in range(8):
            p0, p1 = R+2*(i*8+w), R+2*(i*8+w)+1
            U = T + 4 + 4*(w & 1)
            a(f"""
            v_lshlrev_b32 v{U}, 16, v{p0}
            v_and_b32 v{U+1}, s40, v{p0}
            v_lshlrev_b32 v{U+2}, 16, v{p1}
            v_and_b32 v{U+3}, s40, v{p1}
            v_pk_add_f32 {vr(T,2)}, {vr(T,2)}, {vr(U,2)}
            v_pk_add_f32 {vr(T+2,2)}, {vr(T+2,2)}, {vr(U+2,2)}
            """)
        a(f"""
        v_cvt_pk_bf16_f32 v{T+12}, v{T}, v{T+1}
        v_cvt_pk_bf16_f32 v{T+13}, v{T+2}, v{T+3}
        buffer_store_dwordx2 {vr(T+12,2)}, v7, s[20:23], {'s8' if i < 2 else 's15'} offen offset:{64*i}
        """)
    if not os.environ.get('FST'): mstamp(14)
    mflush()
```

```python
from gen_common import *
KNAME = "sequential_preLN__ssm_conv_h3__glu_gated_reglu__prompt_kernel"

WS_CNT = 0x7E0000
P_X, P_K, P_V, P_SK, P_F, P_D, P_WG, P_WU, P_WD, P_OUT, P_DBG, P_WS = 64, 66, 68, 70, 72, 74, 78, 80, 82, 84, 86, 88
WSR, DBR = 92, 96
WSS = f"s[{WSR}:{WSR+3}]"; DBS = f"s[{DBR}:{DBR+3}]"
SC = os.environ.get("SCD", "sc1")
SCS = "sc1"
C1B, C2A = 80, 96
C2B = WS_CNT; R2B = WS_CNT + 10*128; C3 = WS_CNT + 26*128; R3 = WS_CNT + 42*128
NCONV = 160
CSA = WS_CNT + 12288
SPA = WS_CNT + 24576
FLG = WS_CNT + 40960
FLG1 = WS_CNT + 0x14000
S1C = WS_CNT + 64*128
G1B = WS_CNT + 0x1C000
C1BW = WS_CNT + 80*128
C2AW = WS_CNT + 81*128
RID = 90
FC_STRIDE = 4160
U0_OFF = 4 * FC_STRIDE
U1_OFF = U0_OFF + 4640
IMG = 26112
ST_LDS2 = 4 * IMG
XT_LDS = ST_LDS2 + 16384
STG = 41216
HOFF = 24832
CS_LDS = 3 * STG
ST_LDS = CS_LDS + 1024
HT_LDS = ST_LDS + 16384
SY_LDS = HT_LDS + 12288
LDS_TOTAL = SY_LDS + 64 + 1024

_ts = [0]
def mstamp(slot):
    if not TIMING: return
    a(f"s_memrealtime s[100:101]\ns_waitcnt lgkmcnt(0)\nv_writelane_b32 v255, s100, {slot}")
def mflush():
    if not TIMING: return
    a(f"""
    s_waitcnt vmcnt(0)
    s_memrealtime s[100:101]
    s_waitcnt lgkmcnt(0)
    v_writelane_b32 v255, s100, 15
    s_lshl_b32 s100, s2, 3
    s_add_u32 s100, s100, s3
    s_lshl_b32 s100, s100, 6
    s_add_u32 s100, s100, {WS_TS}
    v_mbcnt_lo_u32_b32 v254, -1, 0
    v_mbcnt_hi_u32_b32 v254, -1, v254
    v_lshlrev_b32 v254, 2, v254
    s_mov_b64 exec, 0xffff
    buffer_store_dword v255, v254, {WSS}, s100 offen
    s_mov_b64 exec, -1
    """)
    if os.environ.get("DBGOUT"):
        a(f"""
        s_lshl_b32 s100, s2, 3
        s_add_u32 s100, s100, s3
        s_cmp_lg_u32 s100, {int(os.environ.get("DBGOUT"))}
        s_cbranch_scc1 M_NODBG
        v_readlane_b32 s100, v255, 0
        s_nop 3
        v_subrev_u32 v255, s100, v255
        s_mov_b64 exec, 0xeeee
        buffer_store_dword v255, v254, {DBS}, 0 offen
        s_mov_b64 exec, -1
        M_NODBG:
        """)

def arr_begin(srd_, cnt_off, n, L, vt=248):
    a(f"""
    v_mov_b32 v{vt}, {cnt_off}
    v_mov_b32 v{vt+1}, 1
    s_mov_b64 exec, 1
    buffer_atomic_add v{vt+1}, v{vt}, {srd_}, 0 offen sc0 sc1
    s_waitcnt vmcnt(0)
    v_readfirstlane_b32 s4, v{vt+1}
    s_mov_b64 exec, -1
    {f"s_and_b32 s4, s4, {n-1}" if (n & (n-1)) == 0 else "s_nop 0"}
    s_cmp_lg_u32 s4, {n-1}
    s_cbranch_scc1 {L}
    """)
def release(rel_off, nrel, vt=248):
    a(f"""
    v_mov_b32 v{vt+3}, 1
    v_lshlrev_b32 v{vt+2}, 7, v0
    v_add_u32 v{vt+2}, {rel_off}, v{vt+2}
    """)
    if nrel < 64: a(f"s_mov_b64 exec, {hex((1 << nrel) - 1) if nrel < 32 else '0x7fffffff'}")
    if nrel == 32: a("s_bitset1_b64 exec, 31")
    for i in range(max(1, nrel // 64)):
        if i: a(f"v_add_u32 v{vt+2}, 8192, v{vt+2}")
        a(f"buffer_store_dword v{vt+3}, v{vt+2}, {WSS}, 0 offen sc1")
    a("s_mov_b64 exec, -1")
def release8(off, vt=248):
    a(f"""
    v_mov_b32 v{vt+3}, 1
    v_lshlrev_b32 v{vt+2}, 10, v0
    v_add_u32 v{vt+2}, {G1B + off}, v{vt+2}
    s_mov_b64 exec, 0xff
    buffer_store_dword v{vt+3}, v{vt+2}, {WSS}, 0 offen sc1
    s_mov_b64 exec, -1
    """)
def pollgrp(off, sleep=1):
    a(f"s_lshr_b32 s4, s2, 5\ns_lshl_b32 s4, s4, 10\ns_add_u32 s4, s4, {G1B + off}\nv_mov_b32 v247, s4")
    poll(WSS, 247, "1", 1, sleep)
def arrive(srd_, cnt_off, n, rel_off, nrel=1, vt=248):
    L = a.label("ARR")
    arr_begin(srd_, cnt_off, n, L, vt)
    release(rel_off, nrel, vt)
    a(f"{L}:")
def lds_last(word, n, Lnot, vt=246):
    a(f"""
    v_mov_b32 v{vt}, {SY_LDS + 4*word}
    v_mov_b32 v{vt+1}, 1
    s_mov_b64 exec, 1
    ds_add_rtn_u32 v{vt+1}, v{vt}, v{vt+1}
    s_waitcnt lgkmcnt(0)
    v_readfirstlane_b32 s4, v{vt+1}
    s_mov_b64 exec, -1
    s_cmp_lg_u32 s4, {n-1}
    s_cbranch_scc1 {Lnot}
    """)
def lds_add(word, vt=246):
    a(f"""
    v_mov_b32 v{vt}, {SY_LDS + 4*word}
    v_mov_b32 v{vt+1}, 1
    s_mov_b64 exec, 1
    ds_add_u32 v{vt}, v{vt+1}
    s_mov_b64 exec, -1
    """)
def lds_set(word, vt=246):
    a(f"""
    v_mov_b32 v{vt}, {SY_LDS + 4*word}
    v_mov_b32 v{vt+1}, 1
    ds_write_b32 v{vt}, v{vt+1}
    """)
def lds_wait(word, vt=246, n=1):
    L = a.label("LW")
    a(f"""
    v_mov_b32 v{vt}, {SY_LDS + 4*word}
    s_mov_b32 s4, 0
    {L}:
    ds_read_b32 v{vt+1}, v{vt}
    s_add_u32 s4, s4, 1
    s_waitcnt lgkmcnt(0)
    v_cmp_gt_u32 vcc, {n}, v{vt+1}
    s_cmp_gt_u32 s4, 0x400000
    s_cbranch_scc1 {L}_x
    s_cbranch_vccnz {L}
    {L}_x:
    """)
def pollflag(word, sleep=0):
    a(f"s_lshl_b32 s4, s2, 7\ns_add_u32 s4, s4, {FLG + 4*word}\nv_mov_b32 v247, s4")
    poll(WSS, 247, "1", 1, sleep)
def pollrep(word):
    a(f"s_and_b32 s4, s2, 15\ns_lshl_b32 s4, s4, 7\ns_add_u32 s4, s4, {R2B + 4*word}\nv_mov_b32 v247, s4")
    poll(WSS, 247, "1", 1, 1)
def arrive_s1():
    a(f"""
    s_lshr_b32 s38, s2, 5
    s_lshl_b32 s39, s38, 12
    s_add_u32 s39, s39, {FLG1}
    s_and_b32 s4, s38, 3
    s_lshl_b32 s4, s4, 4
    s_lshr_b32 s38, s38, 2
    s_lshl_b32 s38, s38, 7
    s_add_u32 s38, s38, s4
    """)
    L = a.label("ARR")
    arr_begin(DBS, "s38", 32, L)
    release("s39", 32)
    lds_set(13)
    a(f"s_branch {L}_d\n{L}:")
    a(f"s_lshl_b32 s4, s2, 7\ns_add_u32 s4, s4, {FLG1}\nv_mov_b32 v247, s4")
    poll(WSS, 247, "1", 1)
    a(f"{L}_d:")
def arrive_s1b():
    L = a.label("ARR")
    a(f"s_lshr_b32 s38, s2, 5\ns_lshl_b32 s38, s38, 10\ns_add_u32 s38, s38, {G1B}")
    arr_begin(WSS, "s38", 32, L)
    arr_begin(DBS, 64, 8, L)
    release8(256)
    a(f"{L}:")
def poll(srd_, vaddr, execmask, target, sleep=0, vt=252):
    L = a.label("POLL")
    a(f"""
    s_mov_b64 exec, {execmask}
    s_mov_b32 s4, 0
    {L}:
    buffer_load_dword v{vt}, v{vaddr}, {srd_}, 0 offen {SCS}
    s_add_u32 s4, s4, 1
    s_waitcnt vmcnt(0)
    v_cmp_gt_u32 vcc, {target}, v{vt}
    s_cmp_gt_u32 s4, 0x40000
    s_cbranch_scc1 {L}_x
    """)
    if sleep: a(f"s_sleep {sleep}")
    a(f"""
    s_cbranch_vccnz {L}
    {L}_x:
    s_mov_b64 exec, -1
    """)
def sdiv(dst, src, n):
    a(f"s_mul_i32 s{dst}, s{src}, {(65536 + n - 1) // n}\ns_lshr_b32 s{dst}, s{dst}, 16")
def sel(d, t, e):
    lit = lambda x: isinstance(x, int) and not (-16 <= x <= 64)
    if lit(t) and lit(e): return f"s_mov_b32 s{d}, {e}\ns_cmov_b32 s{d}, {t}"
    return f"s_cselect_b32 s{d}, {t}, {e}"


TRS = 144
def tile_lane_setup(tsg):
    a(f"""
    v_and_b32 v6, 3, v0
    v_lshrrev_b32 v7, 2, v0                ; rg
    s_and_b32 s38, s2, 31
    s_lshl_b32 s38, s38, 6                 ; row0
    s_lshr_b32 s39, s2, 5
    s_mul_i32 s39, s39, 80
    s_lshl_b32 s27, s{tsg}, 5
    s_add_u32 s39, s39, s27                ; cbase
    s_mul_i32 s26, s3, {32*TRS}
    s_add_u32 s26, s26, {ST_LDS2}
    s_cmp_ge_u32 s3, 4
    s_cselect_b32 s27, {32*TRS}, 0
    s_sub_u32 s26, s26, s27
    v_mul_u32_u24 v5, {8*TRS}, v6
    v_add_u32 v5, s26, v5
    v_lshl_add_u32 v4, v7, 2, s38          ; s0
    v_mul_u32_u24 v1, 1280, v4
    v_lshl_add_u32 v188, s{tsg}, 2, v6
    v_cmp_gt_u32 vcc, 10, v188
    v_lshl_add_u32 v6, v6, 3, s39          ; c0
    v_lshl_add_u32 v1, v6, 1, v1
    v_mov_b32 v4, 0x80000000
    v_cndmask_b32 v1, v4, v1, vcc
    v_lshrrev_b32 v4, 3, v0
    v_mul_u32_u24 v189, {TRS}, v4
    v_add_u32 v4, s39, v4
    v_lshlrev_b32 v4, 12, v4
    v_and_b32 v188, 7, v0
    v_lshl_add_u32 v4, v188, 4, v4
    v_lshl_add_u32 v189, v188, 4, v189
    v_add_u32 v189, s26, v189
    """)
def tile_store(region, rowoff_sgpr, R):
    a("s_waitcnt lgkmcnt(0)")
    for i in range(4): a(f"ds_read_b128 {vr(R+4*i,4)}, v189 offset:{8*TRS*i}")
    for i in range(4):
        a(f"""
        s_lshl_b32 s41, s5, 2
        s_add_u32 s41, s41, {i}
        s_cmp_lt_u32 s41, 10
        s_cselect_b32 s41, s{rowoff_sgpr}, 0x40000000
        s_add_u32 s41, s41, {region + i*32768}
        s_waitcnt lgkmcnt({3-i})
        buffer_store_dwordx4 {vr(R+4*i,4)}, v4, {WSS}, s41 offen {SC}
        """)

def mega():
    name = KNAME
    a.begin(name)
    a(f"""
    s_cmp_ge_u32 s2, 256
    s_cbranch_scc1 M_END
    s_load_dwordx16 s[64:79], s[0:1], 0
    s_load_dwordx8 s[80:87], s[0:1], 64
    s_load_dwordx2 s[88:89], s[0:1], 96
    v_lshrrev_b32 v1, 6, v0
    v_and_b32 v0, 63, v0
    v_readfirstlane_b32 s3, v1
    s_mov_b32 s40, 0xffff0000
    s_mov_b32 s43, 0x3f803f80
    s_mov_b32 s{WSR+2}, {WS_TS + 0x40000 if TIMING else WS_END}
    s_mov_b32 s{WSR+3}, 0x20000
    s_mov_b32 s{DBR+2}, 256
    s_mov_b32 s{DBR+3}, 0x20000
    s_and_b32 s5, s3, 3
    s_lshr_b32 s6, s2, 5                   ; g
    s_and_b32 s7, s6, 1
    s_lshl_b32 s7, s7, 2
    s_add_u32 s7, s7, s2
    s_and_b32 s7, s7, 31                   ; r
    s_mul_i32 s8, s6, 20
    s_add_u32 s8, s8, s7
    s_mul_i32 s9, s6, 12
    s_add_u32 s9, s9, s7
    s_add_u32 s9, s9, 140
    s_cmp_lt_u32 s7, 20
    s_cselect_b32 s{RID}, s8, s9
    """)
    if TIMING: a("v_mov_b32 v255, 0")
    mstamp(0)
    tile_lane_setup(5)
    a(f"""
    s_cmp_ge_u32 s3, 4
    s_cbranch_scc1 M_UPPER
    """)
    a(f"""
    v_add_u32 v2, -3840, v1
    v_lshlrev_b32 v3, 3, v6
    s_lshl_b32 s28, s{RID}, 2
    s_add_u32 s28, s28, s3
    s_cmp_lt_u32 s{RID}, {NCONV}
    s_cselect_b32 s28, s28, 0
    s_cselect_b32 s18, 4096, 0
    s_lshl_b32 s29, s28, 12
    v_lshlrev_b32 v190, 4, v0
    v_add_u32 v191, -8, v190
    v_add_u32 v192, 1016, v190
    s_waitcnt lgkmcnt(0)
    """)
    srd(20, P_K, NB_SD); srd(24, P_V, NB_SD); srd(32, P_SK, D*8)
    for i in range(3):
        a(f"buffer_load_dwordx4 {vr(8+4*i,4)}, v2, s[20:23], 0 offen offset:{i*1280}")
    for i in range(4):
        a(f"buffer_load_dwordx4 {vr(20+4*i,4)}, v1, s[20:23], 0 offen offset:{i*1280}")
    for i in range(4):
        a(f"buffer_load_dwordx4 {vr(36+4*i,4)}, v1, s[24:27], 0 offen offset:{i*1280}")
    for i in range(4):
        a(f"buffer_load_dwordx4 {vr(68+4*i,4)}, v3, s[32:35], 0 offen offset:{i*16}")
    a(f"""
    s_add_u32 s16, s{P_F}, s29
    s_addc_u32 s17, s{P_F+1}, 0
    s_mov_b32 s19, 0x20000
    s_mov_b32 s{WSR}, s{P_WS}
    s_mov_b32 s{WSR+1}, s{P_WS+1}
    s_mov_b32 s{DBR}, s{P_DBG}
    s_mov_b32 s{DBR+1}, s{P_DBG+1}
    s_lshl_b32 s8, s2, 7
    s_add_u32 s8, s8, {FLG1}
    s_lshl_b32 s9, s6, 7
    s_add_u32 s9, s9, {G1B}
    s_and_b32 s10, s2, 31
    s_cmp_eq_u32 s10, 0
    s_mov_b32 s9, 0x40000000
    v_mov_b32 v198, s8
    v_mov_b32 v199, s9
    v_cmp_eq_u32 vcc, 0, v0
    v_mov_b32 v194, 0
    v_mov_b32 v195, 0
    v_mov_b32 v196, 0
    v_mov_b32 v197, 0
    v_cndmask_b32 v198, v199, v198, vcc
    s_cmp_eq_u32 s3, 3
    s_cselect_b32 s10, 0, 0x40000000
    s_mov_b64 exec, 3
    buffer_store_dwordx4 v[194:197], v198, {WSS}, s10 offen sc1
    s_mov_b64 exec, -1
    """)
    E = 200
    FD = True
    def floads():
        for i in range(4):
            a(f"buffer_load_dwordx4 {vr(E+6*i+2,4)}, v190, s[16:19], 0 offen offset:{1024*i}")
            if i == 0: a(f"buffer_load_dwordx2 {vr(E,2)}, v191, s[16:19], 0 offen")
            else: a(f"buffer_load_dwordx2 {vr(E+6*i,2)}, v192, s[16:19], 0 offen offset:{1024*(i-1)}")
    if not FD: floads()
    a(f"""
    v_sub_u32 v7, 15, v7
    v_lshl_add_u32 v5, v7, 3, v5
    s_sub_u32 s31, 1984, s38
    s_lshl_b32 s31, s31, 1
    s_and_b32 s36, s28, 0xfffffffe
    s_lshl_b32 s36, s36, 1
    s_load_dword s37, s[{P_D}:{P_D+1}], s36
    s_mul_i32 s30, s3, {IMG}
    v_add_u32 v193, s30, v190
    v_mov_b32 v194, 0
    v_mov_b32 v195, 0
    v_mov_b32 v196, 0
    v_mov_b32 v197, 0
    s_mov_b64 exec, 7
    """)
    for c in range(4): a(f"ds_write_b128 v193, v[194:197] offset:{c*FC_STRIDE}")
    a("s_mov_b64 exec, 0xfffffff")
    a(f"ds_write_b128 v193, v[194:197] offset:{U0_OFF+4096}")
    a(f"ds_write_b128 v193, v[194:197] offset:{U1_OFF+4096}")
    a("s_mov_b64 exec, -1")
    a(f"""
    v_mov_b32 v198, {SY_LDS}
    ds_write_b128 v198, v[194:197]
    ds_write_b128 v198, v[194:197] offset:16
    ds_write_b128 v198, v[194:197] offset:32
    ds_write_b128 v198, v[194:197] offset:48
    s_waitcnt lgkmcnt(0)
    s_barrier                 ; B_init
    s_waitcnt vmcnt({0 if FD else 8})
    """)
    mstamp(1)
    lds_add(5)
    a("s_cmp_eq_u32 s3, 3\ns_cbranch_scc1 M_SKIPKV")
    Q = 144
    def xreg(e):
        return Q + 4*(e & 3) + (2 if e < 4 else 0)
    for jj, j in enumerate((0, 2, 1, 3)):
        wa0, wa1, wb0, wb1 = 68+4*j, 68+4*j+1, 68+4*j+2, 68+4*j+3
        a(f"""
        v_lshlrev_b32 v106, 16, v{wa0}
        v_lshlrev_b32 v107, 16, v{wb0}
        v_and_b32 v108, s40, v{wa0}
        v_and_b32 v109, s40, v{wb0}
        v_lshlrev_b32 v110, 16, v{wa1}
        v_lshlrev_b32 v111, 16, v{wb1}
        v_and_b32 v112, s40, v{wa1}
        v_and_b32 v113, s40, v{wb1}
        """)
        for i in range(7):
            a(f"v_lshlrev_b32 v{84+2*i}, 16, v{8+4*i+j}")
            a(f"v_and_b32 v{85+2*i}, s40, v{8+4*i+j}")
        for i in range(4):
            a(f"v_lshlrev_b32 v{98+2*i}, 16, v{36+4*i+j}")
            a(f"v_and_b32 v{99+2*i}, s40, v{36+4*i+j}")
        for rho in range(4):
            acc = 114 + 2*rho
            a(f"v_pk_mul_f32 {vr(acc,2)}, {vr(84+2*(rho+3),2)}, {vr(106,2)}")
            for t in range(1, 4):
                a(f"v_pk_fma_f32 {vr(acc,2)}, {vr(84+2*(rho+3-t),2)}, {vr(106+2*t,2)}, {vr(acc,2)}")
        for rho in range(4):
            acc = 114 + 2*rho
            a(f"v_pk_mul_f32 {vr(acc,2)}, {vr(acc,2)}, {vr(98+2*rho,2)}")
        for h in range(2):
            o = Q + 2*(2*j + h)
            a(f"v_cvt_pk_bf16_f32 v{o}, v{114+6+h}, v{114+4+h}")
            a(f"v_cvt_pk_bf16_f32 v{o+1}, v{114+2+h}, v{114+0+h}")
            a(f"ds_write_b64 v5, {vr(o,2)} offset:{TRS*(2*j+h)}")
    tile_store(WS_UR, 31, 160)
    floads()
    a("s_waitcnt vmcnt(8)")
    mstamp(2)
    lds_add(0)
    a("s_branch M_KVDONE\nM_SKIPKV:")
    floads()
    a(f"""
    M_KVDONE:
    s_cmp_ge_u32 s{RID}, {NCONV}
    s_cbranch_scc1 M_LOWNC
    """)
    T = 80
    for i in range(4):
        e = E + 6*i; t = T + 12*(i & 1)
        a(f"s_waitcnt vmcnt({8 - 2*(i+1)})")
        a(f"ds_write_b128 v193, {vr(e+2,4)} offset:{3*FC_STRIDE+48+1024*i}")
        for j in range(4): a(f"v_alignbit_b32 v{t+j}, v{e+j+1}, v{e+j}, 16")
        a(f"ds_write_b128 v193, {vr(t,4)} offset:{48+1024*i}")
        for j in range(4): a(f"v_alignbit_b32 v{t+4+j}, v{e+j+2}, v{e+j+1}, 16")
        a(f"ds_write_b128 v193, {vr(t+4,4)} offset:{2*FC_STRIDE+48+1024*i}")
        for j in range(4): a(f"v_mov_b32 v{t+8+j}, v{e+j+1}")
        a(f"ds_write_b128 v193, {vr(t+8,4)} offset:{FC_STRIDE+48+1024*i}")
    a(f"""
    v_mov_b32 v1, v190
    v_and_b32 v2, 15, v0
    v_lshrrev_b32 v3, 4, v0
    v_add_u32 v6, 8, v1
    v_and_b32 v8, 1, v2
    v_lshlrev_b32 v8, 2, v8
    v_lshrrev_b32 v9, 1, v2
    v_lshl_add_u32 v8, v9, 5, v8
    v_lshl_add_u32 v8, v3, 3, v8           ; P0'
    v_lshlrev_b32 v12, 1, v8
    v_lshlrev_b32 v13, 2, v8
    v_add_u32 v13, {ST_LDS2}, v13
    s_lshl_b32 s31, s3, 12
    s_add_u32 s31, s31, {XT_LDS}
    v_add_u32 v7, s31, v12
    v_and_b32 v9, 3, v2
    v_mul_u32_u24 v9, {FC_STRIDE}, v9
    v_lshrrev_b32 v10, 2, v2
    v_add_u32 v10, v10, v3
    v_lshl_add_u32 v14, v10, 4, v9
    v_add_u32 v14, s30, v14                ; A addr
    v_and_b32 v9, 1, v2
    v_mul_u32_u24 v9, {U1_OFF-U0_OFF}, v9
    v_lshrrev_b32 v10, 1, v2
    v_lshlrev_b32 v10, 2, v10
    v_sub_u32 v10, v3, v10
    v_add_u32 v10, 28, v10
    v_lshl_add_u32 v15, v10, 4, v9
    s_add_u32 s32, s30, {U0_OFF}
    v_add_u32 v15, s32, v15                ; B addr
    v_sub_u32 v11, {2044-1792}, v8
    v_lshlrev_b32 v11, 1, v11
    s_add_u32 s32, s30, {U1_OFF}
    v_add_u32 v11, s32, v11
    s_add_u32 s20, s{P_WS}, s29
    s_addc_u32 s21, s{P_WS+1}, 0
    s_mov_b32 s22, 4096
    s_mov_b32 s23, 0x20000
    s_mul_i32 s41, s28, {HS}
    s_add_u32 s41, s41, {WS_HT}
    s_add_u32 m0, s30, {U1_OFF}
    """)
    ACC = 16
    for i in range(32): a(f"v_mov_b32 v{ACC+i}, 0")
    BUF = [48, 112]
    a("s_waitcnt lgkmcnt(0)")
    for i in range(8): a(f"ds_read_b128 {vr(BUF[0]+4*i,4)}, v14 offset:{512*i}")
    a("s_cmp_lg_u32 s3, 3\ns_cbranch_scc1 M_NOS1")
    lds_wait(0, n=7)
    arrive_s1()
    lds_set(1)
    a("s_branch M_S1OK\nM_NOS1:")
    lds_wait(1)
    a("M_S1OK:")
    mstamp(3)
    for i in range(4):
        a(f"buffer_load_dwordx4 v1, s[20:23], 0 offen offset:{1024*i} {SC} lds")
    a(f"s_add_u32 m0, s30, {U0_OFF}\ns_nop 0")
    for i in range(4):
        a(f"buffer_load_dwordx4 v6, s[20:23], 0 offen offset:{1024*i} {SC} lds")
    a("s_waitcnt vmcnt(0)")
    mstamp(4)
    lds_add(7)
    def reads(buf, nu):
        A = [f"ds_read_b128 {vr(BUF[buf]+4*i,4)}, v14 offset:{512*i+64*nu}" for i in range(8)]
        B = [f"ds_read_b128 {vr(BUF[buf]+32+4*i,4)}, v15 offset:{512*(7-i)+64*nu}" for i in range(8)]
        return [A[0]] + B + A[1:]
    def mfmas(buf):
        out = []
        for mu in range(8):
            for tau in range(8-mu):
                t = mu + tau
                out.append(f"v_mfma_f32_16x16x32_bf16 {vr(ACC+4*t,4)}, {vr(BUF[buf]+4*mu,4)}, {vr(BUF[buf]+32+4*tau,4)}, {vr(ACC+4*t,4)}")
        return out
    for i in range(8): a(f"ds_read_b128 {vr(BUF[0]+32+4*i,4)}, v15 offset:{512*(7-i)}")
    a("s_mov_b32 s46, 0")
    a("M2_LOOP:")
    for half in range(2):
        a("s_waitcnt lgkmcnt(0)")
        rs = reads(1-half, half+1)
        ms = mfmas(half)
        for i, m in enumerate(ms):
            a(m)
            if i % 2 == 0 and rs: a(rs.pop(0))
            if half == 1 and i == 33:
                a("v_add_u32 v14, 128, v14\nv_add_u32 v15, 128, v15\ns_add_u32 s46, s46, 1\ns_cmp_lt_u32 s46, 4")
    a("s_cbranch_scc1 M2_LOOP")
    a("s_waitcnt lgkmcnt(0)")
    mstamp(5)
    UR_, RR, CR, XR = 48, 64, 96, 160
    for t in range(8): a(f"ds_read_b64 {vr(UR_+2*t,2)}, v11 offset:{512*(7-t)}")
    lds_wait(8)
    for t in range(8):
        a(f"ds_read_b64 {vr(XR+2*t,2)}, v7 offset:{512*t}")
        a(f"ds_read_b128 {vr(RR+4*t,4)}, v13 offset:{1024*t}")
        a(f"ds_read_b128 {vr(CR+4*t,4)}, v13 offset:{8192+1024*t}")
    a(f"""
    s_lshl_b32 s36, s28, 4
    s_and_b32 s36, s36, 16
    s_lshr_b32 s37, s37, s36
    s_lshl_b32 s37, s37, 16
    v_add_u32 v9, s30, v12
    s_waitcnt lgkmcnt(0)
    """)
    for t in range(8):
        u0, u1 = UR_+2*t, UR_+2*t+1
        x0, x1 = XR+2*t, XR+2*t+1
        Tt = 128 + 16*(t & 1)
        a(f"""
        v_and_b32 v{Tt+0}, s40, v{u1}
        v_lshlrev_b32 v{Tt+1}, 16, v{u1}
        v_and_b32 v{Tt+2}, s40, v{u0}
        v_lshlrev_b32 v{Tt+3}, 16, v{u0}
        v_lshlrev_b32 v{Tt+4}, 16, v{x0}
        v_and_b32 v{Tt+5}, s40, v{x0}
        v_lshlrev_b32 v{Tt+6}, 16, v{x1}
        v_and_b32 v{Tt+7}, s40, v{x1}
        """)
        for j in range(4):
            a(f"v_fmac_f32 v{ACC+4*t+j}, s37, v{Tt+j}")
        for j in (0, 2):
            a(f"v_pk_fma_f32 {vr(Tt+8+j,2)}, {vr(Tt+4+j,2)}, {vr(RR+4*t+j,2)}, {vr(CR+4*t+j,2)}")
        for j in (0, 2):
            a(f"v_pk_fma_f32 {vr(Tt+j,2)}, {vr(ACC+4*t+j,2)}, {vr(Tt+8+j,2)}, {vr(Tt+4+j,2)}")
        a(f"""
        v_cvt_pk_bf16_f32 v{Tt+12}, v{Tt+0}, v{Tt+1}
        v_cvt_pk_bf16_f32 v{Tt+13}, v{Tt+2}, v{Tt+3}
        """)
        a(f"ds_write_b64 v9, {vr(Tt+12,2)} offset:{512*t}")
        if t & 1:
            k = t >> 1
            a(f"ds_read_b128 {vr(176+4*k,4)}, v193 offset:{1024*k}")
            if k: a(f"s_waitcnt lgkmcnt(3)\nbuffer_store_dwordx4 {vr(176+4*(k-1),4)}, v1, {WSS}, s41 offen offset:{1024*(k-1)} {SC}")
    a(f"s_waitcnt lgkmcnt(0)\nbuffer_store_dwordx4 {vr(188,4)}, v1, {WSS}, s41 offen offset:3072 {SC}")
    a("s_waitcnt vmcnt(0)")
    mstamp(6)
    lds_last(6, 4, "M_NOS2")
    a(f"""
    s_lshr_b32 s38, s{RID}, 4
    s_lshl_b32 s39, s38, 2
    s_add_u32 s39, s39, {R2B}
    s_lshl_b32 s38, s38, 7
    s_add_u32 s38, s38, {C2B}
    """)
    arrive(WSS, "s38", 16, "s39", 16)
    a("M_NOS2:\ns_branch M_P2")
    a(f"""
    M_LOWNC:
    s_cmp_lg_u32 s3, 3
    s_cbranch_scc1 M_PACK
    """)
    lds_wait(0, n=7)
    arrive_s1()
    lds_set(1)
    a("s_branch M_PACK")
    a(f"""
    M_UPPER:
    s_mov_b32 s41, 0x05040100
    s_mov_b32 s42, 0x07060302
    v_lshl_add_u32 v5, v7, 3, v5
    s_lshl_b32 s31, s38, 1
    s_waitcnt lgkmcnt(0)
    s_mov_b32 s{WSR}, s{P_WS}
    s_mov_b32 s{WSR+1}, s{P_WS+1}
    s_mov_b32 s{DBR}, s{P_DBG}
    s_mov_b32 s{DBR+1}, s{P_DBG+1}
    """)
    srd(16, P_X, NB_SD)
    a(f"""
    s_cmp_eq_u32 s3, 7
    s_cbranch_scc1 M_STATS
    s_getpc_b64 s[44:45]
    M_PCREF:
    s_sub_u32 s44, s44, M_PCREF-{KNAME}
    s_subb_u32 s45, s45, 0
    s_lshl_b32 s46, s5, 13
    v_lshlrev_b32 v8, 7, v0
    v_add_u32 v8, s46, v8
    v_min_u32 v8, M_CODE_END-{KNAME}-4, v8
    {"global_load_dword v9, v8, s[44:45]" if os.environ.get("NOCPF") != "1" else "s_nop 0"}
    s_lshr_b32 s46, s2, 3
    s_add_u32 s46, s46, s5
    s_and_b32 s46, s46, 7
    s_lshl_b32 s46, s46, 22
    v_lshlrev_b32 v10, 16, v0
    {f"buffer_load_dword v11, v10, {WSS}, s46 offen sc1" if os.environ.get("TLB") == "1" else "s_nop 0"}
    s_barrier                 ; B_init
    """)
    if os.environ.get("XG") == "1": lds_wait(5, n=4)
    if os.environ.get("XG") == "2": lds_wait(0, n=4)
    for i in range(4):
        a(f"buffer_load_dwordx4 {vr(52+4*i,4)}, v1, s[16:19], 0 offen offset:{i*1280}")
    a("s_mov_b32 s44, 0x05040100\ns_waitcnt vmcnt(0)")
    for e in range(8):
        j, h = e >> 1, e & 1
        selr = "s42" if h else "s44"
        a(f"v_perm_b32 v{8+2*e}, v{52+4+j}, v{52+j}, {selr}")
        a(f"v_perm_b32 v{9+2*e}, v{52+12+j}, v{52+8+j}, {selr}")
        a(f"ds_write_b64 v5, {vr(8+2*e,2)} offset:{TRS*e}")
    tile_store(WS_XT, 31, 24)
    a("s_branch M_UPDONE")
    a(f"""
    M_STATS:
    s_and_b32 s36, s2, 31
    s_lshl_b32 s36, s36, 6
    s_lshr_b32 s37, s2, 5
    s_lshl_b32 s37, s37, 3
    s_add_u32 s36, s36, s37
    v_and_b32 v6, 15, v0
    v_lshrrev_b32 v7, 4, v0
    v_add_u32 v7, s36, v7
    v_mul_u32_u24 v1, 1280, v7
    v_lshl_add_u32 v1, v6, 4, v1
    v_add_u32 v2, 5120, v1
    v_lshlrev_b32 v5, 2, v7
    v_add_u32 v5, {WS_R1}, v5
    v_lshl_add_u32 v5, v6, 13, v5
    v_cmp_lt_u32 vcc, 1, v6
    v_mov_b32 v8, 0x80000000
    v_lshlrev_b32 v9, 4, v0
    v_cndmask_b32 v5, v5, v8, vcc
    v_add_u32 v9, {WS_CNT}, v9
    v_mov_b32 v100, 0
    v_mov_b32 v101, 0
    v_mov_b32 v102, 0
    v_mov_b32 v103, 0
    s_and_b32 s36, s2, 31
    s_cmp_lg_u32 s36, 0
    s_cbranch_scc1 M_NOZERO0
    s_lshr_b32 s39, s2, 5
    s_mul_i32 s36, s39, 9216
    s_add_u32 s37, s36, 4096
    s_add_u32 s38, s36, 8192
    s_lshl_b32 s39, s39, 10
    s_add_u32 s39, s39, {G1B - WS_CNT}
    """)
    for i in range(9):
        a(f"buffer_store_dwordx4 v[100:103], v9, {WSS}, {['s36','s37','s38'][i>>2]} offen offset:{1024*(i&3)} {SCS}")
    a(f"""
    buffer_store_dwordx4 v[100:103], v9, {WSS}, s39 offen {SCS}
    M_NOZERO0:
    s_barrier                 ; B_init
    M_NOZERO:
    """)
    if os.environ.get("XG") == "1": lds_wait(5, n=4)
    if os.environ.get("XG") == "2": lds_wait(0, n=4)
    for p in range(2):
        for i in range(5):
            a(f"buffer_load_dwordx4 {vr(16+20*p+4*i,4)}, v{1+p}, s[16:19], 0 offen offset:{i*256}")
    a("s_waitcnt vmcnt(0)")
    a("v_cmp_eq_u32 vcc, 0, v6")
    for p in range(2):
        for i in range(20):
            r = 16 + 20*p + i
            a(f"v_dot2_f32_bf16 v{100+2*p}, v{r}, s43, v{100+2*p}")
            a(f"v_dot2_f32_bf16 v{101+2*p}, v{r}, v{r}, v{101+2*p}")
    a("s_nop 2")
    for sh in (8, 4, 2, 1):
        for r in range(100, 104):
            a(f"v_add_f32_dpp v{r}, v{r}, v{r} row_ror:{sh} row_mask:0xf bank_mask:0xf")
    a(f"s_mov_b32 s44, {hexf(1.0/640)}\ns_mov_b32 s45, {hexf(1e-5)}")
    for p in range(2):
        sm, sq = 100+2*p, 101+2*p
        a(f"""
        v_mul_f32 v{sm}, s44, v{sm}
        v_mul_f32 v{sq}, s44, v{sq}
        v_fma_f32 v{sq}, -v{sm}, v{sm}, v{sq}
        v_max_f32 v{sq}, 0, v{sq}
        v_add_f32 v{sq}, s45, v{sq}
        v_rsq_f32 v{sq}, v{sq}
        s_nop 0
        v_mul_f32 v{sm}, v{sm}, v{sq}
        v_sub_f32 v{sm}, 0, v{sm}
        v_cndmask_b32 v{sm}, v{sm}, v{sq}, vcc
        buffer_store_dword v{sm}, v5, {WSS}, 0 offen offset:{16*p} {SC}
        """)
    a(f"""
    M_UPDONE:
    s_waitcnt vmcnt(0)
    """)
    mstamp(2)
    lds_add(0)
    a(f"""
    s_cmp_lg_u32 s3, 4
    s_cbranch_scc1 M_UPNA
    v_lshlrev_b32 v1, 4, v0
    s_mov_b32 s36, {WS_R1}
    s_lshl_b32 s37, s{RID}, 14
    s_add_u32 s37, s37, {WS_XT}
    """)
    lds_wait(1)
    mstamp(3)
    a(f"""
    v_mov_b32 v246, {SY_LDS + 52}
    ds_read_b32 v247, v246
    s_waitcnt lgkmcnt(0)
    v_cmp_eq_u32 vcc, 0, v247
    s_cbranch_vccnz M_NOTOP
    """)
    arr_begin(DBS, 64, 8, "M_NOTOP")
    release8(256)
    a("M_NOTOP:")
    def dma4(blk0, src):
        for blk in range(blk0, blk0 + 4):
            a(f"s_mov_b32 m0, {ST_LDS2 + blk*4096}\ns_nop 0")
            for i in range(4):
                a(f"buffer_load_dwordx4 v1, {WSS}, s{src} offen offset:{1024*i} {SC} lds")
            a(f"s_add_u32 s{src}, s{src}, 4096")
    a(f"s_cmp_ge_u32 s{RID}, {NCONV}\ns_cbranch_scc1 M_NOXD")
    lds_wait(7, n=4)
    dma4(4, 37)
    a("M_NOXD:")
    pollgrp(256)
    lds_set(3)
    lds_set(4)
    a(f"s_cmp_ge_u32 s{RID}, {NCONV}\ns_cbranch_scc1 M_PACK")
    mstamp(4)
    dma4(0, 36)
    a("s_waitcnt vmcnt(0)")
    mstamp(5)
    lds_set(8)
    a(f"""
    s_branch M_UPC
    M_UPNA:
    s_cmp_ge_u32 s{RID}, {NCONV}
    s_cbranch_scc1 M_PACK
    M_UPC:
    """)
    def wtouch():
        return
        a(f"""
        s_and_b32 s8, s3, 3
        s_lshl_b32 s8, s8, 6
        v_add_u32 v8, s8, v0                   ; idx
        v_mul_u32_u24 v9, 171, v8
        v_lshrrev_b32 v9, 11, v9
        v_mul_u32_u24 v10, 12, v9
        v_sub_u32 v10, v8, v10
        v_mul_u32_u24 v9, 3072, v9
        v_lshl_add_u32 v9, v10, 7, v9
        v_cmp_gt_u32 vcc, 240, v8
        v_mov_b32 v10, 0x40000000
        s_lshr_b32 s8, s2, 3
        s_mul_i32 s8, s8, {20*3072}
        s_bfe_u32 s12, s2, 0x10002
        s_mul_i32 s12, s12, 1536
        s_add_u32 s8, s8, s12
        v_cndmask_b32 v9, v10, v9, vcc
        """)
        srd(16, P_WG, D*F*2); srd(20, P_WU, D*F*2)
        a("buffer_load_dword v11, v9, s[16:19], s8 offen\nbuffer_load_dword v12, v9, s[20:23], s8 offen")
    lds_wait(8)
    a(f"""
    M_W4PRE:
    s_and_b32 s8, s2, 7
    s_lshr_b32 s7, s8, 2
    s_lshl_b32 s7, s7, 3
    s_lshr_b32 s8, s2, 5
    s_add_u32 s7, s7, s8                   ; fb
    s_lshr_b32 s12, s7, 1
    s_mul_i32 s8, s12, {48*5120}
    s_add_u32 s8, s8, {WS_WP2}
    s_mul_i32 s12, s3, {6*5120}
    s_add_u32 s31, s8, s12
    v_lshlrev_b32 v4, 4, v0
    """)
    lds_last(12, 1, "M_W4W")
    lds_wait(1)
    pollgrp(384)
    lds_set(11)
    a("M_W4W:")
    lds_wait(11)
    wtouch()
    for q in range(30):
        a(f"buffer_load_dwordx4 {vr(86+4*q,4)}, v4, {WSS}, s31 offen offset:{1024*(q&3)} {SC}")
        if q & 3 == 3: a("s_add_u32 s31, s31, 4096")
    mstamp(6)
    a(f"""
    s_branch M_P2
    """)
    a(f"""
    M_PACK:
    s_sub_u32 s28, s{RID}, {NCONV}
    s_mul_i32 s33, s28, 3
    s_add_u32 s33, s33, s3
    s_add_u32 s33, s33, 480
    s_min_u32 s33, s33, 720
    s_mul_i32 s34, s28, 5
    s_add_u32 s34, s34, s3
    s_sub_u32 s34, s34, 3
    s_cmp_lt_u32 s3, 3
    s_cselect_b32 s28, s33, s34
    v_lshlrev_b32 v1, 4, v0
    v_lshrrev_b32 v3, 4, v0
    s_lshl_b32 s30, s3, 13
    s_mov_b32 s19, 0x20000
    s_mov_b32 s23, 0x20000
    v_and_b32 v28, 1, v3
    v_lshlrev_b32 v28, 12, v28
    v_lshrrev_b32 v29, 1, v3
    v_bfe_u32 v30, v0, 2, 2
    v_lshl_add_u32 v29, v29, 3, v30
    v_lshl_add_u32 v28, v29, 7, v28
    v_and_b32 v29, 3, v0
    v_lshl_add_u32 v28, v29, 3, v28
    v_add_u32 v28, s30, v28
    v_lshlrev_b32 v29, 2, v0
    v_cmp_gt_u32 vcc, 32, v0
    v_mov_b32 v30, 0x40000000
    v_lshrrev_b32 v31, 3, v0
    v_cndmask_b32 v29, v30, v29, vcc
    v_lshrrev_b32 v26, 5, v0
    v_and_b32 v27, 7, v0
    s_sub_u32 s45, s28, 480
    s_cmp_ge_u32 s28, 480
    """)
    SB = 52
    a("\n".join([sel(44,"s45","s28"), sel(45,10,24), sel(46,(65536+9)//10,(65536+23)//24),
                 sel(47,64*1280,32*3072), sel(48,1280,3072), sel(49,4,0),
                 sel(50,16*1280,8*3072), sel(51,5,6), sel(SB+4,5120,6144),
                 sel(60,48,40), sel(61,WS_WP2,0x40000000), sel(62,(65536+4)//5,(65536+5)//6),
                 f"s_cselect_b32 s16, s{P_WD}, s{P_WG}\ns_cselect_b32 s17, s{P_WD+1}, s{P_WG+1}\ns_cselect_b32 s20, s{P_WD}, s{P_WU}\ns_cselect_b32 s21, s{P_WD+1}, s{P_WU+1}",
                 sel(31,5120,0), sel(32,0x40000000,CSA)]))
    a(f"""
    s_cmp_lt_u32 s28, {0 if os.environ.get('E3') else 720}
    s_cselect_b32 s18, {D*F*2}, 0
    s_cselect_b32 s33, 0, 0x40000000
    s_mov_b32 s22, s18
    s_add_u32 s61, s61, s33
    s_mul_i32 s46, s44, s46
    s_lshr_b32 s46, s46, 16
    s_mul_i32 s45, s46, s45
    s_sub_u32 s45, s44, s45
    s_mul_i32 s47, s46, s47
    s_lshl_b32 s33, s45, 7
    s_add_u32 s47, s47, s33
    v_mad_u32_u24 v25, v26, s49, v31
    v_mul_u32_u24 v25, s48, v25
    v_lshl_add_u32 v25, v27, 4, v25
    s_add_u32 s31, s31, s47
    """)
    if os.environ.get("W2G") == "1": lds_wait(1)
    a(f"s_cmp_lt_u32 s3, 3\ns_cbranch_scc1 M_NOGATE")
    lds_wait(1)
    a("M_NOGATE:")
    for q in range(8):
        sr = 47 if q < 4 else 31
        a(f"s_add_u32 m0, s30, {q*1024}\ns_nop 0\nbuffer_load_dwordx4 v25, s[{16+4*(q>>2)}:{19+4*(q>>2)}], s{sr} offen lds\ns_add_u32 s{sr}, s{sr}, s50")
    for b in range(4):
        a(f"""
        s_lshl_b32 s33, s45, 2
        s_add_u32 s33, s33, {b}
        s_mul_i32 s34, s33, s62
        s_lshr_b32 s34, s34, 16
        s_mul_i32 s35, s34, s51
        s_sub_u32 s35, s33, s35
        s_mul_i32 s34, s34, s60
        s_lshl_b32 s33, s46, 1
        s_add_u32 s34, s34, s33
        s_mul_i32 s34, s34, s51
        s_add_u32 s34, s34, s35
        s_lshl_b32 s34, s34, 10
        s_add_u32 s{SB+b}, s34, s61
        """)
    a(f"s_lshl_b32 s34, s45, 9\ns_add_u32 s{SB+5}, s34, s32")
    a("s_waitcnt vmcnt(0)")
    mstamp(3)
    R0 = 32
    for aa in range(2):
        for b in range(4):
            R = R0 + 4*(aa*4+b)
            for x in range(2):
                a(f"ds_read_b64_tr_b16 {vr(R+2*x,2)}, v28 offset:{aa*2048 + x*512 + b*32}")
    C0 = 16
    for b in range(4): a(f"v_mov_b32 v{C0+b}, 0")
    a("s_waitcnt lgkmcnt(0)")
    for aa in range(2):
        for b in range(4):
            R = R0 + 4*(aa*4+b)
            a(f"buffer_store_dwordx4 {vr(R,4)}, v1, {WSS}, s{SB+b} offen {SC}")
            if aa == 0: a(f"s_add_u32 s{SB+b}, s{SB+b}, s{SB+4}")
            for e in range(4):
                a(f"v_dot2_f32_bf16 v{C0+b}, v{R+e}, s43, v{C0+b}")
    a("s_nop 2")
    for b in range(4): a(f"v_mov_b32 v{C0+4+b}, v{C0+b}")
    a("s_nop 1")
    for b in range(4): a(f"v_permlane32_swap_b32 v{C0+b}, v{C0+4+b}")
    a("s_nop 1")
    for b in range(4): a(f"v_add_f32 v{C0+b}, v{C0+b}, v{C0+4+b}")
    a("s_cmp_lt_u32 s3, 3\ns_cbranch_scc1 M_NOW3")
    lds_wait(3)
    a("M_NOW3:")
    for b in range(4): a(f"buffer_atomic_add_f32 v{C0+b}, v29, {WSS}, s{SB+5} offen offset:{128*b} sc1")
    a("s_waitcnt vmcnt(0)")
    mstamp(4)
    a("s_cmp_lt_u32 s3, 3\ns_cbranch_scc1 M_ARRW")
    lds_last(9, 5, "M_PKD")
    arrive(WSS, C2AW, 96, FLG + 12, 256)
    a("M_PKD:\ns_cmp_ge_u32 s3, 4\ns_cbranch_scc1 M_W4PRE\ns_branch M_P2\nM_ARRW:")
    lds_last(10, 3, "M_P2")
    lds_wait(1)
    a(f"s_lshr_b32 s38, s2, 5\ns_lshl_b32 s38, s38, 10\ns_add_u32 s38, s38, {G1B + 128}")
    arr_begin(WSS, "s38", 12, "M_P2")
    arr_begin(DBS, 192, 8, "M_P2")
    release8(384)
    a("M_P2:\ns_barrier                  ; B_e")
    from mega34 import p34
    p34()
    a("M_END:")
    a.end(name, 256, 102)
    a("M_CODE_END:")
    a.launches.append(f"; @launch grid=(256,1,1) block=(512,1,1) lds={LDS_TOTAL}")
```
